```python
import torch

def _softmax(x, axis=-1):
    return torch.softmax(x, dim=axis)
def _gelu(x):
    return torch.nn.functional.gelu(x, approximate="tanh")
def _silu(x):
    return torch.nn.functional.silu(x)
def _sigmoid(x):
    return torch.sigmoid(x)
def _layernorm(x, axis=-1, eps=1e-5):
    m = x.mean(dim=axis, keepdim=True)
    v = x.var(dim=axis, keepdim=True, unbiased=False)
    return (x - m) / torch.sqrt(v + eps)
def _scatter_add(tgt, idx, src, axis=0):
    return tgt.clone().index_add_(axis, idx, src)
def _segment_sum(src, seg, n):
    out = torch.zeros((n,) + src.shape[1:], dtype=src.dtype)
    return out.index_add_(0, seg, src)
def _pad(x, pw):
    flat = tuple(v for pair in reversed(pw) for v in pair)
    return torch.nn.functional.pad(x, flat)

kernel_name = 'recurrent_scan__softmax_full_mha__dense_activation_squared_relu__prompt'

def setup_inputs():

    _w = (lambda a: (lambda t: t.to(torch.bfloat16) if t.is_floating_point() else t)(torch.as_tensor(a)))
    def _A_setup():
        B, S, D = 1, 2048, 512
        return {
            "x": _w((lambda *s: torch.randn(*s, dtype=torch.bfloat16) * 0.05)(B, S, D)),
            "wqkv": _w((lambda *s: torch.randn(*s, dtype=torch.bfloat16) * 0.05)(D, 3 * D)),
            "wo": _w((lambda *s: torch.randn(*s, dtype=torch.bfloat16) * 0.05)(D, D)),
        }
    _A_in = _A_setup()

    def _B_setup():
        B, S, D, F = 1, 2048, 512, 1792
        return {
            "x": _w((lambda *s: torch.randn(*s, dtype=torch.bfloat16) * 0.05)(B, S, D)),
            "w1": _w((lambda *s: torch.randn(*s, dtype=torch.bfloat16) * 0.05)(D, F)),
            "b1": _w((lambda *s: torch.randn(*s, dtype=torch.bfloat16) * 0.4)(F)),
            "w2": _w((lambda *s: torch.randn(*s, dtype=torch.bfloat16) * 0.05)(F, D)),
            "b2": _w((lambda *s: torch.randn(*s, dtype=torch.bfloat16) * 1.6)(D)),
        }
    _B_in = _B_setup()

    return {
        "A_x": _A_in["x"],
        "A_wqkv": _A_in["wqkv"],
        "A_wo": _A_in["wo"],
        "B_x": _B_in["x"],
        "B_w1": _B_in["w1"],
        "B_b1": _B_in["b1"],
        "B_w2": _B_in["w2"],
        "B_b2": _B_in["b2"],
    }

def reference(A_x, A_wqkv, A_wo, B_x, B_w1, B_b1, B_w2, B_b2):
    def _A_ref(x, wqkv, wo):
        B, S, D = x.shape
        H = 32; Dh = D // H
        qkv = (lambda x, *d: x.permute(*d))((x @ wqkv).reshape(B, S, 3, H, Dh), 2, 0, 3, 1, 4)
        q, k, v = qkv[0], qkv[1], qkv[2]
        scale = Dh ** -0.5
        scores = torch.einsum("bhqd,bhkd->bhqk", q, k) * scale
        p = _softmax(scores, axis=-1)
        o = torch.einsum("bhqk,bhkd->bhqd", p, v)
        return (lambda x, *d: x.permute(*d))(o, 0, 2, 1, 3).reshape(B, S, D) @ wo

    def _B_ref(x, w1, b1, w2, b2):
        h = torch.einsum("bsd,df->bsf", x, w1) + b1
        zero = torch.zeros_like(h)
        r = torch.where(h > zero, h, zero)
        h = r * r
        out = torch.einsum("bsf,fd->bsd", h, w2) + b2
        return out

    x = A_x
    xn = _layernorm(x, axis=-1)
    s = _A_ref(xn, A_wqkv, A_wo)
    g = _silu(_B_ref(xn, B_w1, B_b1, B_w2, B_b2))
    return x + s * g
```

```python
import re


def vr(a, n=1):
    return f"v{a}" if n == 1 else f"v[{a}:{a+n-1}]"


def sr(a, n=1):
    return f"s{a}" if n == 1 else f"s[{a}:{a+n-1}]"


class Asm:
    def __init__(self):
        self.lines = []
        self._uid = 0

    def __call__(self, s):
        for ln in s.strip("\n").split("\n"):
            ln = ln.strip()
            if ln:
                self.lines.append("    " + ln)

    def label(self, name):
        self.lines.append(name + ":")

    def uid(self, p="L"):
        self._uid += 1
        return f"{p}_{self._uid}"

    def comment(self, s):
        self.lines.append("    ; " + s)

    def raw(self, s):
        self.lines.append(s)

    def text(self):
        return "\n".join(self.lines) + "\n"


class VAlloc:
    def __init__(self, start=1):
        self.n = start

    def __call__(self, cnt=1, align=None):
        if align is None:
            align = 1 if cnt == 1 else 2 if cnt < 4 else 4
        self.n = (self.n + align - 1) // align * align
        r = self.n
        self.n += cnt
        assert self.n <= 256, "out of vgprs"
        return r


_REG = re.compile(r"^(-|\|)*([vsa])(\d+)\|?$")
_RNG = re.compile(r"^(-|\|)*([vsa])\[(\d+):(\d+)\]\|?$")
TRANS = ("v_exp_f32", "v_log_f32", "v_rcp_f32", "v_rsq_f32", "v_sqrt_f32", "v_sin_f32", "v_cos_f32",
         "v_exp_f16", "v_rcp_iflag_f32")


def _regs(tok):
    tok = tok.strip()
    m = _REG.match(tok)
    if m:
        return {(m.group(2), int(m.group(3)))}
    m = _RNG.match(tok)
    if m:
        return {(m.group(2), i) for i in range(int(m.group(3)), int(m.group(4)) + 1)}
    if tok == "vcc":
        return {("s", "vcc")}
    if tok == "exec":
        return {("s", "exec")}
    if tok == "m0":
        return {("s", "m0")}
    return set()


class Ins:
    def __init__(self, text, idx):
        self.text = text
        self.idx = idx
        t = text.split(";")[0].strip()
        parts = t.split(None, 1)
        self.op = parts[0]
        ops = []
        if len(parts) > 1:
            rest = parts[1]
            ops = [o.strip() for o in rest.split(",")]
            last = ops[-1].split()
            self.mods = last[1:]
            ops[-1] = last[0] if last else ""
        else:
            self.mods = []
        self.ops = ops
        op = self.op
        self.w = set()
        self.r = set()
        self.kind = "other"
        self.states = 1
        self.srcc = set()
        self.ab = set()
        self.passes = 0
        if op == "s_nop":
            self.states = int(ops[0], 0) + 1
            self.kind = "nop"
        elif op.startswith("v_mfma") or op.startswith("v_smfmac"):
            self.kind = "mfma"
            self.passes = 8 if "32x32" in op else 4
            self.w = _regs(ops[0])
            self.ab = _regs(ops[1]) | _regs(ops[2])
            self.srcc = _regs(ops[3])
            self.r = self.ab | self.srcc
            self.dtok = ops[0]
            self.ctok = ops[3]
        elif op.startswith("v_"):
            self.kind = "valu"
            base = op.replace("_e32", "").replace("_e64", "")
            self.base = base
            if base.startswith("v_cmp"):
                self.w = _regs(ops[0])
                for o in ops[1:]:
                    self.r |= _regs(o)
                if base.startswith("v_cmpx"):
                    self.w |= {("s", "exec")}
            elif base.startswith("v_permlane"):
                self.w = _regs(ops[0]) | _regs(ops[1])
                self.r = set(self.w)
            elif base in ("v_add_co_u32", "v_addc_co_u32", "v_sub_co_u32"):
                self.w = _regs(ops[0]) | _regs(ops[1])
                for o in ops[2:]:
                    self.r |= _regs(o)
            else:
                self.w = _regs(ops[0])
                for o in ops[1:]:
                    self.r |= _regs(o)
                if base in ("v_fmac_f32", "v_dot2c_f32_bf16", "v_writelane_b32"):
                    self.r |= self.w
                if base == "v_cndmask_b32" and len(ops) == 3:
                    self.r |= {("s", "vcc")}
        elif op.startswith("ds_"):
            self.kind = "ds"
            if "read" in op or "bpermute" in op or "swizzle" in op:
                self.w = _regs(ops[0])
                for o in ops[1:]:
                    self.r |= _regs(o)
            else:
                for o in ops:
                    self.r |= _regs(o)
        elif op.startswith("buffer_") or op.startswith("global_"):
            self.kind = "vmem"
            lds = "lds" in self.mods
            self.lds = lds
            if "load" in op and not lds:
                self.w = _regs(ops[0])
                for o in ops[1:]:
                    self.r |= _regs(o)
            else:
                for o in ops:
                    self.r |= _regs(o)
                if lds:
                    self.r |= {("s", "m0")}
            self.wide_store = ("store" in op) and ("x4" in op or "x3" in op)
            self.sdata = _regs(ops[0]) if ("store" in op and op.startswith("buffer_")) else set()
        elif op.startswith("s_"):
            self.kind = "salu"
            if op.startswith("s_cmp") or op.startswith("s_bitcmp") or op.startswith("s_cbranch") or op in (
                    "s_branch", "s_waitcnt", "s_barrier", "s_endpgm", "s_setprio", "s_sleep"):
                for o in ops:
                    self.r |= _regs(o)
            else:
                self.w = _regs(ops[0]) if ops else set()
                for o in ops[1:]:
                    self.r |= _regs(o)
                if "saveexec" in op:
                    self.w |= {("s", "exec")}


def _need(p, c):
    n = 0
    vw = {x for x in p.w if x[0] in "va"}
    sw = {x for x in p.w if x[0] == "s"}
    if p.kind == "valu":
        if c.kind == "mfma" and vw & c.r:
            n = max(n, 2)
        if c.kind == "mfma" and ("s", "exec") in sw:
            n = max(n, 4)
        if c.kind == "vmem" and sw & c.r:
            n = max(n, 5)
        if c.kind == "valu":
            if sw & c.r:
                n = max(n, 2)
                if c.base in ("v_readlane_b32", "v_writelane_b32"):
                    n = max(n, 4)
            if c.base in ("v_readlane_b32", "v_readfirstlane_b32") and vw & c.r:
                n = max(n, 1)
            if c.base.startswith("v_permlane") and vw & c.r:
                n = max(n, 2)
            if p.base in TRANS and c.base not in TRANS and vw & c.r:
                n = max(n, 1)
            if any(m.startswith("row_") or m.startswith("quad_perm") or m.startswith("wave_") for m in c.mods) and vw & c.r:
                n = max(n, 2)
            if p.base.startswith("v_dot") and vw & (c.r | c.w) and c.base != p.base:
                n = max(n, 3)
        if c.kind == "salu" and sw & c.r:
            n = max(n, 1)
        if p.base in TRANS and c.kind in ("ds", "vmem") and vw & c.r:
            n = max(n, 1)
    if p.kind == "mfma":
        big = {8: 12, 4: 8}[p.passes]
        if c.kind == "mfma":
            if p.w & c.ab:
                n = max(n, big)
            if p.w & c.srcc:
                if not (p.dtok == c.ctok and p.passes == c.passes):
                    n = max(n, {8: 10, 4: 6}[p.passes])
            elif p.w & c.w:
                n = max(n, {8: 10, 4: 6}[p.passes])
        elif c.kind in ("valu", "ds", "vmem"):
            if p.w & (c.r | c.w):
                n = max(n, big)
            if c.kind == "valu" and p.srcc & c.w:
                n = max(n, {8: 7, 4: 3}[p.passes])
    if p.kind == "vmem" and getattr(p, "wide_store", False):
        if c.kind == "valu" and p.sdata & c.w:
            n = max(n, 2)
        elif p.sdata & c.w:
            n = max(n, 1)
    if p.kind == "salu" and ("s", "m0") in p.w and c.kind == "vmem" and getattr(c, "lds", False):
        n = max(n, 1)
    return n


def check_hazards(text, window=14):
    ins = []
    labels = {}
    for ln in text.split("\n"):
        s = ln.split(";")[0].strip()
        if not s or s.startswith("."):
            continue
        if s.endswith(":"):
            labels[s[:-1]] = len(ins)
            continue
        ins.append(Ins(s, len(ins)))
    succ = []
    for i, x in enumerate(ins):
        sc = []
        if x.op == "s_endpgm":
            pass
        elif x.op == "s_branch":
            sc.append(labels[x.ops[0]])
        else:
            if i + 1 < len(ins):
                sc.append(i + 1)
            if x.op.startswith("s_cbranch"):
                sc.append(labels[x.ops[0]])
        succ.append(sc)
    problems = []
    for i, p in enumerate(ins):
        if p.kind in ("nop", "other"):
            continue
        stack = [(j, 0) for j in succ[i]]
        seen = {}
        while stack:
            j, d = stack.pop()
            if j >= len(ins) or d >= window:
                continue
            if seen.get(j, 99) <= d:
                continue
            seen[j] = d
            c = ins[j]
            nd = _need(p, c)
            if nd > d:
                problems.append(f"hazard: need {nd} have {d}:\n   [{i}] {p.text}\n   [{j}] {c.text}")
            for k in succ[j]:
                stack.append((k, d + c.states))
    return problems
```

```python
import sys, os
sys.path.insert(0, os.path.dirname(os.path.abspath(__file__)))
from asmlib import Asm, VAlloc, vr, sr, check_hazards

NAME = "recurrent_scan__softmax_full_mha__dense_activation_squared_relu__prompt"
PROF = int(os.environ.get("PROF", "0"))

QF = 0x000000
KVF = 0x200000
HF = 0x600000
W2F = 0xD00000
WOF = 0xF00000
OF = 0x1000000
GF = 0x1200000
RINV2 = 0x1400000
PROFB = 0x1800000
WS_SIZE = 0x10000000

MFMA = "v_mfma_f32_32x32x16_bf16"
MFMA16 = "v_mfma_f32_16x16x32_bf16"
LOG2E = 1.4426950408889634


def f32bits(x):
    import struct
    return struct.unpack("<I", struct.pack("<f", x))[0]


def srd(a, dst, ptr, size):
    a(f"s_mov_b32 s{dst}, s{ptr}")
    a(f"s_and_b32 s{dst+1}, s{ptr+1}, 0xffff")
    a(f"s_mov_b32 s{dst+2}, {size:#x}")
    a(f"s_mov_b32 s{dst+3}, 0x20000")


def stamp(a, kid, slot, sws, wave_s, vtmp):
    if not PROF:
        return
    a("s_memrealtime s[90:91]")
    a(f"s_lshl_b32 s92, s2, 3")
    a(f"s_add_u32 s92, s92, s{wave_s}")
    a(f"s_lshl_b32 s92, s92, 6")
    a(f"s_add_u32 s92, s92, {PROFB + kid*256*8*64 + slot*8:#x}")
    a("s_waitcnt lgkmcnt(0)")
    a(f"v_mov_b32 v{vtmp}, s90")
    a(f"v_mov_b32 v{vtmp+1}, s91")
    a(f"v_mov_b32 v{vtmp+2}, 0")
    a(f"buffer_store_dwordx2 {vr(vtmp,2)}, v{vtmp+2}, {sr(sws,4)}, s92 offen")


def header(a, name):
    a.raw(f".globl {name}")
    a.raw(".p2align 8")
    a.raw(f".type {name},@function")
    a.label(name)


def descriptor(name, nv, ns=102):
    nv = (nv + 7) // 8 * 8
    return f""".amdhsa_kernel {name}
  .amdhsa_next_free_vgpr {nv}
  .amdhsa_next_free_sgpr {ns}
  .amdhsa_accum_offset {nv}
  .amdhsa_group_segment_fixed_size 0
  .amdhsa_kernarg_size 88
  .amdhsa_user_sgpr_count 2
  .amdhsa_user_sgpr_kernarg_segment_ptr 1
  .amdhsa_system_sgpr_workgroup_id_x 1
.end_amdhsa_kernel
"""


K1_SLOT = 45056
K1_TR = 3 * K1_SLOT
K1_STAT = K1_TR + 16384
K1_WS = K1_STAT + 4096
K1_RINV = K1_WS + 3584
K1_LDS = K1_RINV + 512


def gen_k1(a):
    name = "k1_kernel"
    header(a, name)
    SX, SW, SWS, SW2, SWO, SB1 = 4, 8, 12, 16, 20, 24
    sW, sRG, sRT, sCG, sTY, sC = 50, 51, 52, 53, 54, 55
    sXoff, sWoff, sSlotX, sSlotW, sWstep, sMask = 56, 57, 58, 59, 60, 61
    sRd, sDelta, sT0, sT1, sT2, sGW, sRB, sPitch, sWr, sSlotC = 62, 63, 64, 65, 66, 67, 68, 69, 70, 71
    va = VAlloc(1)
    vL = va()
    vT = va(4, 4)
    vX0, vX1, vWg = va(), va(), va()
    vXA = [va() for _ in range(4)]
    vWA = va()
    vL16 = va()
    vSel = va(4)
    vSx, vSq = va(2, 2), va(2, 2)
    vU = va(4, 4)
    vXf = [va(4), va(4)]
    vWf = [[va(4) for _ in range(4)] for _ in range(2)]
    vWs = [va(4) for _ in range(4)]
    vEW = [va(4) for _ in range(4)]
    vEX = va(4)
    vAcc = [va(16, 16) for _ in range(4)]
    vRi = va(16, 4)
    nv = va.n

    a("s_cmp_ge_u32 s2, 256")
    a("s_cbranch_scc1 K1_END")
    a("s_load_dwordx16 s[32:47], s[0:1], 0")
    a("s_load_dwordx2 s[48:49], s[0:1], 80")
    a(f"v_lshrrev_b32 v{vT}, 6, v0")
    a(f"v_and_b32 v{vL}, 63, v0")
    a(f"v_readfirstlane_b32 s{sW}, v{vT}")
    a(f"s_and_b32 s{sT0}, s2, 7")
    a(f"s_lshr_b32 s{sT1}, s2, 3")
    a(f"s_and_b32 s{sRT}, s{sT0}, 1")
    a(f"s_lshl_b32 s{sRT}, s{sRT}, 3")
    a(f"s_and_b32 s{sT2}, s{sT1}, 7")
    a(f"s_add_u32 s{sRT}, s{sRT}, s{sT2}")
    a(f"s_lshr_b32 s{sT1}, s{sT1}, 3")
    a(f"s_and_b32 s{sTY}, s{sT1}, 1")
    a(f"s_lshr_b32 s{sT1}, s{sT1}, 1")
    a(f"s_and_b32 s{sCG}, s{sT0}, 6")
    a(f"s_add_u32 s{sCG}, s{sCG}, s{sT1}")
    a(f"s_and_b32 s{sRG}, s{sW}, 3")
    a(f"s_lshl_b32 s{sRB}, s{sRT}, 2")
    a(f"s_add_u32 s{sRB}, s{sRB}, s{sRG}")
    a(f"s_lshl_b32 s{sGW}, s2, 3")
    a(f"s_add_u32 s{sGW}, s{sGW}, s{sW}")
    a(f"s_mov_b32 s{sMask}, 0xffff0000")
    a(f"s_movk_i32 s{sPitch}, 3072")
    a(f"s_movk_i32 s{sT0}, 128")
    a(f"s_mov_b32 s{sSlotC}, {K1_SLOT}")
    a(f"s_cmp_eq_u32 s{sTY}, 0")
    a(f"s_cselect_b32 s{sPitch}, s{sPitch}, 3584")
    a(f"s_cselect_b32 s{sT0}, s{sT0}, 448")
    a(f"s_mul_i32 s{sWoff}, s{sCG}, s{sT0}")
    a(f"s_lshl_b32 s{sWstep}, s{sPitch}, 6")
    a(f"s_lshl_b32 s{sT0}, s{sRG}, 4")
    a(f"s_mul_i32 s{sT0}, s{sT0}, s{sPitch}")
    a(f"s_add_u32 s{sWoff}, s{sWoff}, s{sT0}")
    a(f"s_lshl_b32 s{sXoff}, s{sRT}, 17")
    a(f"s_lshl_b32 s{sT0}, s{sW}, 14")
    a(f"s_add_u32 s{sXoff}, s{sXoff}, s{sT0}")
    a(f"s_lshl_b32 s{sSlotX}, s{sW}, 11")
    a(f"s_lshl_b32 s{sSlotW}, s{sRG}, 10")
    a(f"v_lshrrev_b32 v{vT}, 3, v{vL}")
    a(f"v_lshrrev_b32 v{vT+1}, 4, v{vL}")
    a(f"v_and_b32 v{vT+2}, 7, v{vL}")
    a(f"v_xor_b32 v{vT+3}, v{vT+2}, v{vT+1}")
    a(f"v_lshlrev_b32 v{vT+3}, 4, v{vT+3}")
    a(f"v_lshl_add_u32 v{vX0}, v{vT}, 10, v{vT+3}")
    a(f"v_xor_b32 v{vX1}, 64, v{vX0}")
    a(f"v_add_u32 v{vX1}, 0x2000, v{vX1}")
    a(f"v_lshrrev_b32 v{vT}, 2, v{vL}")
    a(f"v_and_b32 v{vT+2}, 3, v{vL}")
    a(f"v_lshlrev_b32 v{vT+2}, 4, v{vT+2}")
    a(f"v_mad_u32_u24 v{vWg}, v{vT}, s{sPitch}, v{vT+2}")
    a(f"v_lshl_add_u32 v{vU}, v{vT}, 10, v{vT+2}")
    a(f"v_lshlrev_b32 v{vL16}, 4, v{vL}")
    a(f"v_and_b32 v{vU+1}, 31, v{vL}")
    a(f"v_lshlrev_b32 v{vU+1}, 1, v{vU+1}")
    a("s_waitcnt lgkmcnt(0)")
    srd(a, SX, 32, 2048 * 1024)
    a(f"s_cmp_eq_u32 s{sTY}, 0")
    a(f"s_cselect_b32 s{SW}, s34, s40")
    a(f"s_cselect_b32 s{SW+1}, s35, s41")
    a(f"s_and_b32 s{SW+1}, s{SW+1}, 0xffff")
    a(f"s_lshl_b32 s{SW+2}, s{sPitch}, 9")
    a(f"s_mov_b32 s{SW+3}, 0x20000")
    srd(a, SWS, 48, WS_SIZE)
    srd(a, SW2, 44, 1792 * 1024)
    srd(a, SWO, 36, 512 * 1024)
    srd(a, SB1, 42, 3584)
    stamp(a, 0, 0, SWS, sW, vAcc[3])
    a(f"s_lshr_b32 s{sT0}, s{sW}, 2")
    a(f"s_lshl_b32 s{sT1}, s{sTY}, 1")
    a(f"s_add_u32 s{sT0}, s{sT0}, s{sT1}")
    a(f"s_cmp_eq_u32 s{sT0}, 1")
    a("s_cbranch_scc1 K1_R1")
    a(f"s_cmp_eq_u32 s{sT0}, 2")
    a("s_cbranch_scc1 K1_R2")
    a(f"s_cmp_eq_u32 s{sT0}, 3")
    a("s_cbranch_scc1 K1_R3")

    roles = [
        dict(ty=0, half=0, blks=[0, 1, 2], col=[0, 64, 1024], ori="TTT", kind=["Q", "Q", "K"], sub=[0, 1, 0]),
        dict(ty=0, half=1, blks=[3, 4, 5], col=[1024 + 64, 2048, 2048 + 64], ori="TNN", kind=["K", "V", "V"], sub=[1, 0, 1]),
        dict(ty=1, half=0, blks=[0, 1, 2, 3], col=[0, 64, 128, 192], ori="TTTT", kind=["H"] * 4),
        dict(ty=1, half=1, blks=[4, 5, 6], col=[256, 320, 384], ori="TTT", kind=["H"] * 3),
    ]
    for ri, R in enumerate(roles):
        nb = len(R["blks"])
        half = R["half"]
        P = f"K1_R{ri}"
        a.label(P)

        def dma_x(i):
            return [f"s_add_u32 m0, s{sSlotX}, {i*1024}",
                    f"buffer_load_dwordx4 v{[vX0, vX1][i]}, {sr(SX,4)}, s{sXoff} offen lds"]

        def dma_w(b):
            return [f"s_add_u32 m0, s{sSlotW}, {16384 + R['blks'][b]*4096 - R['col'][b]}",
                    f"buffer_load_dwordx4 v{vWg}, {sr(SW,4)}, s{sWoff} offen offset:{R['col'][b]} lds"]

        def dma_emit(lst):
            for m, l in lst:
                a(m)
                a("s_nop 0")
                a(l)

        def dma_advance():
            a(f"s_add_u32 s{sXoff}, s{sXoff}, 128")
            a(f"s_add_u32 s{sWoff}, s{sWoff}, s{sWstep}")
            a(f"s_add_u32 s{sWr}, s{sWr}, {K1_SLOT}")
            a(f"s_cmp_eq_u32 s{sWr}, {3*K1_SLOT}")
            a(f"s_cselect_b32 s{sT0}, {-2*K1_SLOT & 0xffffffff:#x}, s{sSlotC}")
            a(f"s_cselect_b32 s{sWr}, 0, s{sWr}")
            a(f"s_add_u32 s{sSlotX}, s{sSlotX}, s{sT0}")
            a(f"s_add_u32 s{sSlotW}, s{sSlotW}, s{sT0}")

        a(f"s_mov_b32 s{sWr}, 0")
        dma_emit([dma_x(0), dma_w(0), dma_x(1)] + [dma_w(b) for b in range(1, nb)])
        dma_advance()
        if R["ty"] == 1:
            a(f"s_mul_i32 s{sT1}, s{sCG}, 448")
            for b in range(nb):
                a(f"buffer_load_ushort v{vEW[b]+1}, v{vU+1}, {sr(SB1,4)}, s{sT1} offen offset:{R['col'][b]}")
            nbias = nb
        else:
            nbias = 0
        a(f"s_lshr_b32 s{sT0}, s{sGW}, 4")
        a(f"s_lshl_b32 s{sT0}, s{sT0}, 14")
        a(f"s_and_b32 s{sT1}, s{sGW}, 15")
        a(f"s_lshl_b32 s{sT1}, s{sT1}, 6")
        a(f"s_add_u32 s{sT0}, s{sT0}, s{sT1}")
        a(f"s_lshl_b32 s{sT2}, s{sW}, 11")
        a(f"s_add_u32 m0, s{sT2}, {K1_TR}")
        a("s_nop 0")
        a(f"buffer_load_dwordx4 v{vU}, {sr(SW2,4)}, s{sT0} offen lds")
        a(f"s_lshr_b32 s{sT0}, s{sGW}, 6")
        a(f"s_lshl_b32 s{sT0}, s{sT0}, 14")
        a(f"s_lshr_b32 s{sT1}, s{sGW}, 2")
        a(f"s_and_b32 s{sT1}, s{sT1}, 15")
        a(f"s_lshl_b32 s{sT1}, s{sT1}, 6")
        a(f"s_add_u32 s{sT0}, s{sT0}, s{sT1}")
        a(f"s_cmp_eq_u32 s{sRG}, 0")
        a(f"s_cselect_b32 s{sT0}, s{sT0}, 0x100000")
        a(f"s_add_u32 m0, s{sT2}, {K1_TR + 1024}")
        a("s_nop 0")
        a(f"buffer_load_dwordx4 v{vU}, {sr(SWO,4)}, s{sT0} offen lds")
        n = 2 + nb
        for c in (1, 2):
            dma_emit([dma_x(0), dma_w(0), dma_x(1)] + [dma_w(b) for b in range(1, nb)])
            dma_advance()
        a(f"v_and_b32 v{vT}, 31, v{vL}")
        a(f"v_lshrrev_b32 v{vT+1}, 5, v{vL}")
        a(f"v_bfe_u32 v{vT+2}, v{vL}, 1, 3")
        a(f"v_xor_b32 v{vT+2}, v{vT+2}, v{vT+1}")
        a(f"v_lshlrev_b32 v{vT+2}, 4, v{vT+2}")
        a(f"v_lshl_add_u32 v{vT+2}, v{vT}, 7, v{vT+2}")
        a(f"s_lshl_b32 s{sT0}, s{sRG}, 12")
        a(f"v_add_u32 v{vXA[0]}, s{sT0}, v{vT+2}")
        for s in range(1, 4):
            a(f"v_xor_b32 v{vXA[s]}, {32*s}, v{vXA[0]}")
        a(f"v_bfe_u32 v{vT+2}, v{vL}, 2, 2")
        a(f"v_lshlrev_b32 v{vT+2}, 6, v{vT+2}")
        a(f"v_bfe_u32 v{vT+3}, v{vL}, 4, 1")
        a(f"v_lshl_add_u32 v{vT+2}, v{vT+3}, 5, v{vT+2}")
        a(f"v_and_b32 v{vT+3}, 3, v{vL}")
        a(f"v_lshl_add_u32 v{vT+2}, v{vT+3}, 3, v{vT+2}")
        a(f"v_lshl_add_u32 v{vWA}, v{vT+1}, 9, v{vT+2}")
        a(f"v_add_u32 v{vWA}, 0x4000, v{vWA}")
        a(f"v_lshl_add_u32 v{vRi}, v{vT+1}, 8, v{vT+2}")
        a(f"s_add_u32 s{sT2}, s{sT2}, {K1_TR}")
        a(f"v_add_u32 v{vRi}, s{sT2}, v{vRi}")
        a(f"v_lshrrev_b32 v{vT+2}, 4, v{vL}")
        a(f"v_lshrrev_b32 v{vT+3}, 2, v{vL}")
        a(f"v_xor_b32 v{vT+2}, v{vT+2}, v{vT+3}")
        a(f"v_and_b32 v{vT+2}, 1, v{vT+2}")
        a(f"v_and_or_b32 v{vT+2}, v{vL}, 3, v{vT+2}")
        a(f"v_cmp_eq_u32 vcc, 0, v{vT+2}")
        a(f"v_mov_b32 v{vT+3}, 0x3f803f80")
        a(f"v_mov_b32 v{vSx}, 0")
        a(f"v_cndmask_b32 v{vSel}, 0, v{vT+3}, vcc")
        for i in range(1, 4):
            a(f"v_mov_b32 v{vSel+i}, v{vSel}")
        a(f"v_mov_b32 v{vSx+1}, 0")
        a(f"v_mov_b32 v{vSq}, 0")
        a(f"v_mov_b32 v{vSq+1}, 0")
        for b in range(nb):
            for i in range(16):
                a(f"v_mov_b32 v{vAcc[b]+i}, 0")
            for i in range(4):
                a(f"v_mov_b32 v{vWs[b]+i}, 0")
            a(f"v_mov_b32 v{vEW[b]+2}, 0")
            a(f"v_mov_b32 v{vEW[b]+3}, 0")
            if R["ty"] == 0:
                a(f"v_mov_b32 v{vEW[b]+1}, 0")
        a(f"s_mov_b32 s{sC}, 0")
        a(f"s_mov_b32 s{sRd}, 0")

        def reads(s, st):
            g = []
            for b in range(nb):
                blk = R["blks"][b]
                r = []
                if b == 0:
                    r.append(f"ds_read_b128 {vr(vXf[st],4)}, v{vXA[s]}")
                for rd in range(2):
                    r.append(f"ds_read_b64_tr_b16 {vr(vWf[st][b]+2*rd,2)}, v{vWA} offset:{blk*4096 + s*1024 + rd*256}")
                g.append(r)
            return g

        def mfma(b, st, xf=None, wf=None):
            xf = vXf[st] if xf is None else xf
            wf = vWf[st][b] if wf is None else wf
            A, B = (wf, xf) if R["ori"][b] == "T" else (xf, wf)
            return f"{MFMA} {vr(vAcc[b],16)}, {vr(A,4)}, {vr(B,4)}, {vr(vAcc[b],16)}"

        def stats(st):
            o = []
            for i in range(2):
                r = vXf[st] + 2 * half + i
                t0, t1 = vU + 2 * i, vU + 2 * i + 1
                o += [f"v_and_b32 v{t0}, s{sMask}, v{r}", f"v_lshlrev_b32 v{t1}, 16, v{r}",
                      f"v_add_f32 v{vSx}, v{vSx}, v{t0}", f"v_add_f32 v{vSx+1}, v{vSx+1}, v{t1}",
                      f"v_fmac_f32 v{vSq}, v{t0}, v{t0}", f"v_fmac_f32 v{vSq+1}, v{t1}, v{t1}"]
            return o

        a(f"s_waitcnt vmcnt({2*n + 2 + nbias})")
        a("s_barrier")
        stamp(a, 0, 1, SWS, sW, vRi + 4)
        for g in reads(0, 0):
            for r in g:
                a(r)
        nr = 1 + 2 * nb
        a.label(P + "_LOOP")
        for s in range(4):
            st = s & 1
            stt = stats(st)
            per = (len(stt) + nb - 1) // nb
            if s < 3:
                nxt = reads(s + 1, st ^ 1)
                for b in range(nb):
                    a(f"s_waitcnt lgkmcnt({nr - len(nxt[b])})")
                    a(mfma(b, st))
                    for r in nxt[b]:
                        a(r)
                    for x in stt[b * per:(b + 1) * per]:
                        a(x)
                    if s == 0 and b == 0 or s == 1 and b == 0:
                        L = a.uid("K1_SK")
                        a(f"s_sub_u32 s{sT1}, s{sC}, 1")
                        a(f"s_cmp_gt_u32 s{sT1}, 4")
                        a(f"s_cbranch_scc1 {L}")
                        if s == 0:
                            dma_emit([dma_x(0), dma_w(0), dma_x(1)])
                        else:
                            dma_emit([dma_w(b2) for b2 in range(1, nb)])
                            dma_advance()
                        a.label(L)
            else:
                a("s_waitcnt lgkmcnt(0)")
                a(mfma(0, st))
                for x in stt[0:per]:
                    a(x)
                Llast = a.uid("K1_LAST")
                Lw = a.uid("K1_W")
                Lj = a.uid("K1_J")
                a(f"s_cmp_eq_u32 s{sC}, 7")
                a(f"s_cbranch_scc1 {Llast}")
                a(f"s_add_u32 s{sRd}, s{sRd}, {K1_SLOT}")
                a(f"s_cmp_eq_u32 s{sRd}, {3*K1_SLOT}")
                a(f"s_cselect_b32 s{sDelta}, {-2*K1_SLOT & 0xffffffff:#x}, s{sSlotC}")
                a(f"s_cselect_b32 s{sRd}, 0, s{sRd}")
                for k in range(4):
                    a(f"v_add_u32 v{vXA[k]}, s{sDelta}, v{vXA[k]}")
                a(f"v_add_u32 v{vWA}, s{sDelta}, v{vWA}")
                a(f"s_cmp_eq_u32 s{sC}, 6")
                a(f"s_cbranch_scc1 {Lw}")
                a(f"s_waitcnt vmcnt({n})")
                a(f"s_branch {Lj}")
                a.label(Lw)
                a("s_waitcnt vmcnt(0)")
                a.label(Lj)
                a("s_barrier")
                for g in reads(0, st ^ 1):
                    for r in g:
                        a(r)
                a.label(Llast)
                for b in range(1, nb):
                    a(mfma(b, st))
                    for x in stt[b * per:(b + 1) * per]:
                        a(x)
            L = a.uid("K1_WSK")
            a(f"s_cmp_lg_u32 s{sRG}, {s}")
            a(f"s_cbranch_scc1 {L}")
            for b in range(nb):
                a(f"{MFMA16} {vr(vWs[b],4)}, {vr(vSel,4)}, {vr(vWf[st][b],4)}, {vr(vWs[b],4)}")
            a.label(L)
        a(f"s_add_u32 s{sC}, s{sC}, 1")
        a(f"s_cmp_lt_u32 s{sC}, 8")
        a(f"s_cbranch_scc1 {P}_LOOP")
        stamp(a, 0, 2, SWS, sW, vRi + 4)
        tA, tB = vXf[0], vXf[1]
        a(f"ds_read_b64_tr_b16 {vr(tA,2)}, v{vRi}")
        a(f"ds_read_b64_tr_b16 {vr(tA+2,2)}, v{vRi} offset:512")
        a(f"ds_read_b64_tr_b16 {vr(tB,2)}, v{vRi} offset:1024")
        a(f"ds_read_b64_tr_b16 {vr(tB+2,2)}, v{vRi} offset:1536")
        a(f"v_add_f32 v{vSx}, v{vSx}, v{vSx+1}")
        a(f"v_add_f32 v{vSx+1}, v{vSq}, v{vSq+1}")
        a(f"s_lshl_b32 s{sT0}, s{sRG}, 10")
        a(f"s_add_u32 s{sT0}, s{sT0}, {K1_STAT}")
        a(f"v_lshl_add_u32 v{vT+2}, v{vT}, 5, s{sT0}")
        a(f"v_lshl_add_u32 v{vT+3}, v{vT+1}, 3, v{vT+2}")
        a(f"ds_write_b64 v{vT+3}, {vr(vSx,2)} offset:{half*16}")
        a(f"s_lshl_b32 s{sT0}, s{sRG}, 2")
        a(f"s_add_u32 s{sT0}, s{sT0}, {K1_WS}")
        a(f"v_lshl_add_u32 v{vT+3}, v{vT}, 4, s{sT0}")
        for b in range(nb):
            a(f"ds_write_b32 v{vT+3}, v{vWs[b]} offset:{R['blks'][b]*512}")
        a(f"s_lshl_b32 s{sT0}, s{sGW}, 10")
        a(f"s_add_u32 s{sT0}, s{sT0}, {W2F:#x}")
        a(f"s_lshl_b32 s{sT1}, s{sGW}, 8")
        a(f"s_add_u32 s{sT1}, s{sT1}, {WOF:#x}")
        a("s_waitcnt lgkmcnt(0)")
        a("s_barrier")
        a(f"ds_read_b128 {vr(vRi,4)}, v{vT+2}")
        a(f"ds_read_b128 {vr(vRi+4,4)}, v{vT+2} offset:16")
        a(f"v_lshlrev_b32 v{vT+3}, 4, v{vT}")
        a(f"v_add_u32 v{vT+3}, {K1_WS}, v{vT+3}")
        for b in range(nb):
            a(f"ds_read_b128 {vr(vWs[b],4)}, v{vT+3} offset:{R['blks'][b]*512}")
        a(f"buffer_store_dwordx4 {vr(tA,4)}, v{vL16}, {sr(SWS,4)}, s{sT0} offen")
        L = a.uid("K1_NOWO")
        a(f"s_cmp_lg_u32 s{sRG}, 0")
        a(f"s_cbranch_scc1 {L}")
        a(f"buffer_store_dwordx4 {vr(tB,4)}, v{vL16}, {sr(SWS,4)}, s{sT1} offen")
        a.label(L)
        a(f"s_waitcnt lgkmcnt({nb})")
        m, q = vU, vU + 1
        a(f"v_add_f32 v{m}, v{vRi}, v{vRi+2}")
        a(f"v_add_f32 v{q}, v{vRi+1}, v{vRi+3}")
        a(f"v_add_f32 v{vU+2}, v{vRi+4}, v{vRi+6}")
        a(f"v_add_f32 v{vU+3}, v{vRi+5}, v{vRi+7}")
        a(f"v_add_f32 v{m}, v{m}, v{vU+2}")
        a(f"v_add_f32 v{q}, v{q}, v{vU+3}")
        a(f"v_mul_f32 v{m}, {f32bits(1/512):#x}, v{m}")
        a(f"v_mul_f32 v{q}, {f32bits(1/512):#x}, v{q}")
        a(f"v_fma_f32 v{q}, -v{m}, v{m}, v{q}")
        a(f"v_max_f32 v{q}, 0, v{q}")
        a(f"v_cvt_pk_bf16_f32 v{q}, v{q}, v{q}")
        a(f"v_and_b32 v{q}, s{sMask}, v{q}")
        a(f"v_add_f32 v{q}, {f32bits(1e-5):#x}, v{q}")
        a(f"v_cvt_pk_bf16_f32 v{q}, v{q}, v{q}")
        a(f"v_and_b32 v{q}, s{sMask}, v{q}")
        a(f"v_sqrt_f32 v{q}, v{q}")
        a(f"v_cvt_pk_bf16_f32 v{m}, -v{m}, -v{m}")
        a(f"v_cmp_eq_u32 vcc, 0, v{vT+1}")
        a(f"v_cvt_pk_bf16_f32 v{q}, v{q}, v{q}")
        a(f"v_lshrrev_b32 v{vU+2}, 16, v{q}")
        a(f"v_and_b32 v{q}, s{sMask}, v{q}")
        a(f"v_cndmask_b32 v{vEX}, 0, v{m}, vcc")
        a(f"v_cndmask_b32 v{vEX+1}, 0, v{vU+2}, vcc")
        a(f"v_mov_b32 v{vEX+2}, 0")
        a(f"v_mov_b32 v{vEX+3}, 0")
        rinv = vSx
        a(f"v_rcp_f32 v{rinv}, v{q}")
        a("s_waitcnt lgkmcnt(0)")
        for b in range(nb):
            w = vWs[b]
            a(f"v_add_f32 v{w}, v{w}, v{w+1}")
            a(f"v_add_f32 v{w+2}, v{w+2}, v{w+3}")
            a(f"v_add_f32 v{w}, v{w}, v{w+2}")
            a(f"v_cvt_pk_bf16_f32 v{w+1}, v{w}, v{w}")
            a(f"v_and_b32 v{w+1}, s{sMask}, v{w+1}")
            a(f"v_sub_f32 v{w+2}, v{w}, v{w+1}")
            a(f"v_cvt_pk_bf16_f32 v{vEW[b]}, v{w+1}, v{w+2}")
        if "V" in R["kind"]:
            a(f"s_lshl_b32 s{sT0}, s{sRG}, 7")
            a(f"s_add_u32 s{sT0}, s{sT0}, {K1_RINV}")
            a(f"v_lshl_add_u32 v{vT+2}, v{vT}, 2, s{sT0}")
            a(f"ds_write_b32 v{vT+2}, v{rinv}")
            a(f"v_lshl_add_u32 v{vT+2}, v{vT+1}, 4, s{sT0}")
            a("s_waitcnt lgkmcnt(0)")
            for k in range(4):
                a(f"ds_read_b128 {vr(vRi+4*k,4)}, v{vT+2} offset:{32*k}")
        else:
            a("s_nop 1")
        for b in range(nb):
            a(mfma(b, 0, xf=vEX, wf=vEW[b]))
        if R["ty"] == 0:
            a(f"v_mul_f32 v{vSq}, {f32bits(0.25*LOG2E):#x}, v{rinv}")
            a(f"v_bfe_u32 v{vT+2}, v{vL}, 4, 1")
            a(f"v_lshlrev_b32 v{vT+2}, 17, v{vT+2}")
            a(f"v_lshl_add_u32 v{vT+2}, v{vT+1}, 9, v{vT+2}")
            a(f"v_and_b32 v{vT+3}, 15, v{vL}")
            a(f"v_lshl_add_u32 v{vT+2}, v{vT+3}, 4, v{vT+2}")
            a(f"s_lshl_b32 s{sT0}, s{sCG}, 18")
            a(f"s_lshl_b32 s{sT1}, s{sRB}, 10")
            a(f"s_add_u32 s{sT0}, s{sT0}, s{sT1}")
            a(f"s_lshl_b32 s{sT1}, s{sT0}, 1")
            a(f"s_add_u32 s{sT1}, s{sT1}, {KVF:#x}")
            a("s_nop 2")
            if "V" in R["kind"]:
                a("s_waitcnt lgkmcnt(0)")
        else:
            a(f"s_mul_i32 s{sT0}, s{sRB}, {112*1024}")
            a(f"s_mul_i32 s{sT1}, s{sCG}, {14*1024}")
            a(f"s_add_u32 s{sT0}, s{sT0}, s{sT1}")
            a(f"s_add_u32 s{sT0}, s{sT0}, {HF:#x}")
            if half == 0:
                L = a.uid("K1_NORI")
                a(f"s_cmp_lg_u32 s{sCG}, 0")
                a(f"s_cbranch_scc1 {L}")
                a(f"v_mul_f32 v{vSq}, v{rinv}, v{rinv}")
                a(f"v_lshlrev_b32 v{vT+2}, 2, v{vT}")
                a(f"s_lshl_b32 s{sT1}, s{sRB}, 7")
                a(f"s_add_u32 s{sT1}, s{sT1}, {RINV2:#x}")
                a(f"buffer_store_dword v{vSq}, v{vT+2}, {sr(SWS,4)}, s{sT1} offen")
                a.label(L)
            a("s_nop 7")
        for b in range(nb):
            A = vAcc[b]
            kind = R["kind"][b]
            if kind in "QK":
                sc = vSq if kind == "Q" else rinv
                for i in range(16):
                    a(f"v_mul_f32 v{A+i}, v{sc}, v{A+i}")
            elif kind == "V":
                for i in range(16):
                    a(f"v_mul_f32 v{A+i}, v{vRi+i}, v{A+i}")
            else:
                for i in range(16):
                    a(f"v_mul_f32 v{A+i}, v{A+i}, |v{A+i}|")
            for i in range(8):
                a(f"v_cvt_pk_bf16_f32 v{A+i}, v{A+2*i}, v{A+2*i+1}")
            if kind == "H":
                for i in range(8):
                    a(f"v_pk_max_i16 v{A+i}, v{A+i}, 0")
            for s in range(2):
                if kind == "Q":
                    a(f"s_add_u32 s{sT2}, s{sT0}, {QF + (2*R['sub'][b] + s)*65536:#x}")
                    a(f"buffer_store_dwordx4 {vr(A+4*s,4)}, v{vL16}, {sr(SWS,4)}, s{sT2} offen")
                elif kind == "K":
                    a(f"s_add_u32 s{sT2}, s{sT1}, {(2*R['sub'][b] + s)*131072:#x}")
                    a(f"buffer_store_dwordx4 {vr(A+4*s,4)}, v{vL16}, {sr(SWS,4)}, s{sT2} offen")
                elif kind == "V":
                    a(f"s_add_u32 s{sT2}, s{sT1}, {2*R['sub'][b]*131072:#x}")
                    a(f"buffer_store_dwordx4 {vr(A+4*s,4)}, v{vT+2}, {sr(SWS,4)}, s{sT2} offen offset:{1024 + s*256}")
                else:
                    a(f"s_add_u32 s{sT2}, s{sT0}, {R['blks'][b]*2048}")
                    a(f"buffer_store_dwordx4 {vr(A+4*s,4)}, v{vL16}, {sr(SWS,4)}, s{sT2} offen offset:{s*1024}")
        if PROF:
            a("s_waitcnt vmcnt(0)")
            stamp(a, 0, 3, SWS, sW, vRi + 4)
        a("s_endpgm")
    a.label("K1_END")
    a("s_endpgm")
    return name, nv


K2_RED = 131072
K2_LDS = K2_RED + 24576
RP = 272


class Cnt:
    def __init__(self):
        self.q = []

    def push(self, tag):
        self.q.append(tag)

    def need(self, tag):
        for i in range(len(self.q) - 1, -1, -1):
            if self.q[i] == tag:
                return len(self.q) - 1 - i
        raise KeyError(tag)


def gen_k2(a):
    name = "k2_kernel"
    header(a, name)
    SWS, SB2, SF = 4, 8, 12
    sW, sHead, sQB, sRT, sCG, sIt = 50, 51, 52, 53, 54, 55
    sT0, sT1, sT2, sHA, sWB, sKV = 56, 57, 58, 59, 60, 61
    sVM = 62
    sTile = 64
    va = VAlloc(1)
    vL = va()
    vL16 = va()
    vKA = va()
    vRA = va()
    vT = va(4, 4)
    vQ = va(4)
    vK = va(4)
    vV = [va(4), va(4)]
    vP = va(8, 4)
    vF = [dict(A0=va(4), A1=va(4), B0=va(4), B1=va(4)) for _ in range(2)]
    vB2 = va(4)
    vRi2 = va()
    vS = [va(16, 16), va(16, 16)]
    vO = va(16, 16)
    vAcc = [va(16, 16) for _ in range(4)]
    nv = va.n

    a("s_cmp_ge_u32 s2, 256")
    a("s_cbranch_scc1 K2_END")
    a("s_load_dwordx2 s[32:33], s[0:1], 56")
    a("s_load_dwordx2 s[34:35], s[0:1], 80")
    a(f"v_lshrrev_b32 v{vT}, 6, v0")
    a(f"v_and_b32 v{vL}, 63, v0")
    a(f"v_readfirstlane_b32 s{sW}, v{vT}")
    a(f"v_lshlrev_b32 v{vL16}, 4, v{vL}")
    a(f"s_and_b32 s{sT0}, s2, 7")
    a(f"s_lshr_b32 s{sT1}, s2, 3")
    a(f"s_lshl_b32 s{sHead}, s{sT0}, 2")
    a(f"s_and_b32 s{sT2}, s{sT1}, 3")
    a(f"s_add_u32 s{sHead}, s{sHead}, s{sT2}")
    a(f"s_lshr_b32 s{sQB}, s{sT1}, 2")
    a(f"s_lshl_b32 s{sQB}, s{sQB}, 3")
    a(f"s_add_u32 s{sQB}, s{sQB}, s{sW}")
    a(f"s_lshr_b32 s{sRT}, s{sT0}, 1")
    a(f"s_lshl_b32 s{sRT}, s{sRT}, 3")
    a(f"s_and_b32 s{sT2}, s{sT1}, 7")
    a(f"s_add_u32 s{sRT}, s{sRT}, s{sT2}")
    a(f"s_and_b32 s{sCG}, s{sT0}, 1")
    a(f"s_lshl_b32 s{sCG}, s{sCG}, 2")
    a(f"s_lshr_b32 s{sT2}, s{sT1}, 3")
    a(f"s_add_u32 s{sCG}, s{sCG}, s{sT2}")
    a(f"s_lshl_b32 s{sTile}, s{sRT}, 3")
    a(f"s_add_u32 s{sTile}, s{sTile}, s{sCG}")
    a(f"s_lshl_b32 s{sKV}, s{sHead}, 17")
    a(f"s_lshl_b32 s{sT0}, s{sW}, 10")
    a(f"s_add_u32 s{sKV}, s{sKV}, s{sT0}")
    a(f"s_add_u32 s{sKV}, s{sKV}, {KVF:#x}")
    a(f"s_mul_i32 s{sHA}, s{sRT}, {224*1024}")
    a(f"s_mul_i32 s{sT1}, s{sW}, {14*1024}")
    a(f"s_add_u32 s{sHA}, s{sHA}, s{sT1}")
    a(f"s_add_u32 s{sHA}, s{sHA}, {HF:#x}")
    a(f"s_mul_i32 s{sWB}, s{sW}, {14*16384}")
    a(f"s_lshl_b32 s{sT1}, s{sCG}, 11")
    a(f"s_add_u32 s{sWB}, s{sWB}, s{sT1}")
    a(f"s_add_u32 s{sWB}, s{sWB}, {W2F:#x}")
    a(f"s_lshl_b32 s{sT1}, s{sHead}, 16")
    a(f"s_lshl_b32 s{sT2}, s{sQB}, 10")
    a(f"s_add_u32 s{sT1}, s{sT1}, s{sT2}")
    a(f"s_mov_b32 s{sVM}, 0x0000ffff")
    a(f"s_mov_b32 s{sVM+1}, 0x0000ffff")
    a(f"s_mov_b32 m0, s{sT0}")
    a("s_waitcnt lgkmcnt(0)")
    srd(a, SWS, 34, WS_SIZE)
    srd(a, SF, 34, WS_SIZE)
    srd(a, SB2, 32, 1024)
    stamp(a, 1, 0, SWS, sW, vAcc[3])
    vm = Cnt()
    if PROF:
        vm.push("x")
    a(f"buffer_load_dwordx4 {vr(vQ,4)}, v{vL16}, {sr(SWS,4)}, s{sT1} offen")
    vm.push("Q")

    def kv_dma(i):
        a(f"buffer_load_dwordx4 v{vL16}, {sr(SWS,4)}, s{sKV} offen lds")
        a(f"s_add_u32 m0, m0, 0x2000")
        a(f"s_add_u32 s{sKV}, s{sKV}, 0x2000")
        vm.push(f"KV{i}")

    def fload(f, which):
        r = vF[f][which]
        if which == "A0":
            a(f"buffer_load_dwordx4 {vr(r,4)}, v{vL16}, {sr(SF,4)}, s{sHA} offen offset:{f*1024}")
        elif which == "A1":
            a(f"s_add_u32 s{sT0}, s{sHA}, {112*1024}")
            a(f"buffer_load_dwordx4 {vr(r,4)}, v{vL16}, {sr(SF,4)}, s{sT0} offen offset:{f*1024}")
        else:
            if f == 1:
                a(f"s_add_u32 s{sT0}, s{sWB}, 16384")
                so = sT0
            else:
                so = sWB
            a(f"buffer_load_dwordx4 {vr(r,4)}, v{vL16}, {sr(SF,4)}, s{so} offen offset:{1024 if which == 'B1' else 0}")
        vm.push(f"F{f}{which}")

    def fadvance():
        a(f"s_add_u32 s{sHA}, s{sHA}, 2048")
        a(f"s_add_u32 s{sWB}, s{sWB}, 32768")

    kv_dma(0)
    kv_dma(1)
    for f in range(2):
        for w in ("A0", "B1", "A1", "B0"):
            fload(f, w)
    fadvance()
    for i in range(2, 16):
        kv_dma(i)
    for i in range(4):
        a(f"v_mov_b32 v{vT+i}, 0")
    a(f"v_lshlrev_b32 v{vRA}, 4, v0")
    a(f"v_add_u32 v{vRA}, {K2_RED}, v{vRA}")
    for k in range(3):
        a(f"ds_write_b128 v{vRA}, {vr(vT,4)} offset:{k*8192}")
    for q in range(4):
        for i in range(16):
            a(f"v_mov_b32 v{vAcc[q]+i}, 0")
    for i in range(16):
        a(f"v_mov_b32 v{vO+i}, 0")
    a(f"v_and_b32 v{vT}, 0x1b, v{vL}")
    a(f"v_cmp_eq_u32 vcc, 16, v{vT}")
    a(f"v_mov_b32 v{vT+1}, 0x3f803f80")
    a(f"v_mov_b32 v{vKA}, v{vL16}")
    a(f"v_cndmask_b32 v{vV[0]}, 0, v{vT+1}, vcc")
    for i in range(1, 4):
        a(f"v_mov_b32 v{vV[0]+i}, v{vV[0]}")
    for i in range(4):
        a(f"v_mov_b32 v{vV[1]+i}, v{vV[0]}")
    for i in range(4, 8):
        a(f"v_mov_b32 v{vP+i}, 0")
    a(f"v_lshrrev_b32 v{vT}, 5, v{vL}")
    a(f"v_mul_u32_u24 v{vT}, {4*RP}, v{vT}")
    a(f"v_and_b32 v{vT+1}, 31, v{vL}")
    a(f"v_lshl_add_u32 v{vRA}, v{vT+1}, 2, v{vT}")
    a(f"v_add_u32 v{vRA}, {K2_RED}, v{vRA}")
    a(f"s_waitcnt vmcnt({vm.need('KV1')}) lgkmcnt(0)")
    a("s_barrier")
    stamp(a, 1, 1, SWS, sW, vS[1])
    if PROF:
        vm.push("x")
    lg = Cnt()

    def rdK(t):
        a(f"ds_read_b128 {vr(vK,4)}, v{vKA} offset:{t*2048}")
        lg.push("K")

    def rdV(s, t):
        a(f"s_mov_b64 exec, {sr(sVM,2)}")
        a(f"ds_read_b128 {vr(vV[s],4)}, v{vKA} offset:{t*2048 + 1024 + s*256}")
        a("s_mov_b64 exec, -1")
        lg.push(f"V{s}")

    def wl(tag):
        a(f"s_waitcnt lgkmcnt({min(lg.need(tag), 15)})")

    def QK(t):
        wl("K")
        a(f"{MFMA} {vr(vS[t&1],16)}, {vr(vK,4)}, {vr(vQ,4)}, 0")

    def PV(s):
        wl(f"V{s}")
        a(f"{MFMA} {vr(vO,16)}, {vr(vV[s],4)}, {vr(vP+4*s,4)}, {vr(vO,16)}")

    FSEQ = [("A0", "B0", 0), ("A0", "B1", 1), ("A1", "B1", 3), ("A1", "B0", 2)]
    FREL = [[], ["A0"], ["B1"], ["A1", "B0"]]

    rdK(0)
    QK(0)
    rdK(1)
    rdV(1, 0)
    rdV(0, 0)
    a("s_nop 7")

    adds = []
    for q in (0, 1, 3, 2):
        rb, cb = q >> 1, q & 1
        for r in range(16):
            off = (rb * 32 + 8 * (r >> 2) + (r & 3)) * RP + cb * 128
            adds.append(f"ds_add_f32 v{vRA}, v{vAcc[q]+r} offset:{off}")

    def tile(t, mode):
        S = vS[t & 1]
        e = lambda i: a(f"v_exp_f32 v{S+i}, v{S+i}")
        c = lambda i: a(f"v_cvt_pk_bf16_f32 v{vP+i}, v{S+2*i}, v{S+2*i+1}")
        last = mode == "last"

        def add(n):
            if last:
                for _ in range(n):
                    a(adds.pop(0))
                    lg.push("add")
        if t == 6 and mode == "first":
            a(f"s_waitcnt vmcnt({vm.need('KV3')})")
            a("s_barrier")
        if t == 6 and mode == "mid":
            L = a.uid("K2_NB")
            a(f"s_cmp_lg_u32 s{sIt}, 1")
            a(f"s_cbranch_scc1 {L}")
            a("s_barrier")
            a.label(L)
        if not (last and t == 7):
            QK(t + 1)
            if not (last and t >= 6):
                rdK(t + 2)
        for i in range(4):
            e(i)
        add(3)
        PV(1)
        rdV(1, t)
        for i in range(4, 8):
            e(i)
        c(0); c(1); c(2); e(8); c(3); e(9); e(10)
        add(3)
        PV(0)
        if not (last and t == 7):
            rdV(0, t + 1)
        for i in range(11, 16):
            e(i)
        if not last:
            f = t >> 2
            A, B, q = FSEQ[t & 3]
            if (t & 3) == 0:
                a(f"s_waitcnt vmcnt({vm.need(f'F{f}B0')})")
            a(f"{MFMA} {vr(vAcc[q],16)}, {vr(vF[f][A],4)}, {vr(vF[f][B],4)}, {vr(vAcc[q],16)}")
            for w in FREL[t & 3]:
                fload(f, w)
            if t == 7:
                fadvance()
        add(2)
        c(4); c(5); c(6); c(7)

    for t in range(8):
        tile(t, "first")
    a(f"v_add_u32 v{vKA}, 0x4000, v{vKA}")
    a(f"s_mov_b32 s{sIt}, 1")
    a.label("K2_LOOP")
    a(f"s_cmp_eq_u32 s{sIt}, 6")
    a(f"s_cselect_b32 s{SF+2}, 0, s{SF+2}")
    for t in range(8):
        tile(t, "mid")
    a(f"v_add_u32 v{vKA}, 0x4000, v{vKA}")
    a(f"s_add_u32 s{sIt}, s{sIt}, 1")
    a(f"s_cmp_lt_u32 s{sIt}, 7")
    a("s_cbranch_scc1 K2_LOOP")
    a(f"v_lshrrev_b32 v{vT}, 5, v{vL}")
    a(f"v_lshlrev_b32 v{vT}, 3, v{vT}")
    a(f"s_lshl_b32 s{sT0}, s{sCG}, 7")
    a(f"s_and_b32 s{sT1}, s{sW}, 3")
    a(f"s_lshl_b32 s{sT1}, s{sT1}, 5")
    a(f"s_add_u32 s{sT0}, s{sT0}, s{sT1}")
    a(f"buffer_load_dwordx2 {vr(vB2,2)}, v{vT}, {sr(SB2,4)}, s{sT0} offen")
    a(f"buffer_load_dwordx2 {vr(vB2+2,2)}, v{vT}, {sr(SB2,4)}, s{sT0} offen offset:16")
    a(f"v_and_b32 v{vT+1}, 31, v{vL}")
    a(f"v_lshlrev_b32 v{vT+2}, 2, v{vT+1}")
    a(f"s_lshl_b32 s{sT0}, s{sRT}, 8")
    a(f"s_lshr_b32 s{sT2}, s{sW}, 2")
    a(f"s_lshl_b32 s{sT2}, s{sT2}, 7")
    a(f"s_add_u32 s{sT0}, s{sT0}, s{sT2}")
    a(f"s_add_u32 s{sT0}, s{sT0}, {RINV2:#x}")
    a(f"buffer_load_dword v{vRi2}, v{vT+2}, {sr(SWS,4)}, s{sT0} offen")
    a(f"v_mul_u32_u24 v{vT+3}, {RP}, v{vT+1}")
    a(f"v_lshl_add_u32 v{vT+3}, v{vT}, 1, v{vT+3}")
    a(f"s_lshr_b32 s{sT2}, s{sW}, 2")
    a(f"s_mul_i32 s{sT2}, s{sT2}, {32*RP}")
    a(f"s_lshl_b32 s{sT1}, s{sT1}, 1")
    a(f"s_add_u32 s{sT2}, s{sT2}, s{sT1}")
    a(f"s_add_u32 s{sT2}, s{sT2}, {K2_RED}")
    a(f"v_add_u32 v{vT+3}, s{sT2}, v{vT+3}")
    for t in range(8):
        tile(t, "last")
    assert not adds
    a("s_nop 0")
    PV(1)
    stamp(a, 1, 2, SWS, sW, vS[1])
    a("s_waitcnt lgkmcnt(0)")
    a("s_barrier")
    Z = vS[0]
    a(f"ds_read_b128 {vr(Z,4)}, v{vT+3}")
    a(f"ds_read_b128 {vr(Z+4,4)}, v{vT+3} offset:32")
    a(f"s_lshl_b32 s{sT0}, s{sQB}, 15")
    a(f"s_lshl_b32 s{sT1}, s{sHead}, 10")
    a(f"s_add_u32 s{sT0}, s{sT0}, s{sT1}")
    a(f"s_add_u32 s{sT0}, s{sT0}, {OF:#x}")
    a(f"s_mov_b32 s{sT1}, {f32bits(2.0**-60):#x}")
    a(f"s_mov_b32 s{sT2}, {f32bits(2.0**60):#x}")
    a("s_nop 3")
    a.label("K2_OEPI")
    C = vS[1]
    a(f"v_add_f32 v{C}, |v{vO}|, |v{vO+1}|")
    a(f"v_add_f32 v{C+1}, |v{vO+2}|, |v{vO+3}|")
    a(f"v_add_f32 v{C+2}, |v{vO+4}|, |v{vO+5}|")
    a(f"v_add_f32 v{C+3}, |v{vO+6}|, |v{vO+7}|")
    a(f"v_rcp_f32 v{C+4}, v{vO+8}")
    a(f"v_add_f32 v{C}, v{C}, v{C+1}")
    a(f"v_add_f32 v{C+2}, v{C+2}, v{C+3}")
    a(f"v_cmp_le_f32 s[70:71], s{sT1}, v{vO+8}")
    a(f"v_add_f32 v{C}, v{C}, v{C+2}")
    a(f"v_cmp_ge_f32 s[72:73], s{sT2}, v{vO+8}")
    a(f"v_cmp_gt_f32 vcc, {f32bits(2.0**120):#x}, v{C}")
    for i in range(8):
        a(f"v_mul_f32 v{vO+i}, v{C+4}, v{vO+i}")
    a("s_and_b64 s[70:71], s[70:71], s[72:73]")
    a("s_and_b64 s[70:71], s[70:71], vcc")
    a("s_cmp_eq_u64 s[70:71], exec")
    a("s_cbranch_scc0 K2_SLOW")
    a.label("K2_OST")
    for i in range(4):
        a(f"v_cvt_pk_bf16_f32 v{vO+i}, v{vO+2*i}, v{vO+2*i+1}")
    a(f"buffer_store_dwordx4 {vr(vO,4)}, v{vL16}, {sr(SWS,4)}, s{sT0} offen")
    a("s_waitcnt vmcnt(1) lgkmcnt(0)")
    B = vS[1]
    for i in range(4):
        a(f"v_lshlrev_b32 v{B+2*i}, 16, v{vB2+i}")
        a(f"v_and_b32 v{B+2*i+1}, 0xffff0000, v{vB2+i}")
    for i in range(8):
        a(f"v_fmac_f32 v{B+i}, v{Z+i}, v{vRi2}")
    for i in range(8):
        a(f"v_mul_f32 v{Z+i}, {f32bits(-LOG2E):#x}, v{B+i}")
    for i in range(8):
        a(f"v_exp_f32 v{Z+i}, v{Z+i}")
    for i in range(8):
        a(f"v_add_f32 v{Z+i}, 1.0, v{Z+i}")
    for i in range(8):
        a(f"v_rcp_f32 v{Z+i}, v{Z+i}")
    for i in range(8):
        a(f"v_mul_f32 v{Z+i}, v{Z+i}, v{B+i}")
    for i in range(4):
        a(f"v_cvt_pk_bf16_f32 v{Z+i}, v{Z+2*i}, v{Z+2*i+1}")
    a(f"v_lshlrev_b32 v{vT}, 4, v0")
    a(f"s_lshl_b32 s{sT0}, s{sTile}, 13")
    a(f"s_add_u32 s{sT0}, s{sT0}, {GF:#x}")
    a(f"buffer_store_dwordx4 {vr(Z,4)}, v{vT}, {sr(SWS,4)}, s{sT0} offen")
    if PROF:
        a("s_waitcnt vmcnt(0)")
        stamp(a, 1, 3, SWS, sW, vAcc[0])
    a.label("K2_END")
    a("s_endpgm")
    a.label("K2_SLOW")
    S = vAcc[0]
    M = vAcc[1]
    mx = vAcc[2]
    a("s_waitcnt lgkmcnt(0)")
    a(f"v_mov_b32 v{vKA}, v{vL16}")
    a(f"v_mov_b32 v{mx}, 0xff800000")
    a(f"s_mov_b32 s{sIt}, 0")
    a.label("K2_SL1")
    a(f"ds_read_b128 {vr(vK,4)}, v{vKA}")
    a(f"v_add_u32 v{vKA}, 0x800, v{vKA}")
    a("s_waitcnt lgkmcnt(0)")
    a(f"{MFMA} {vr(S,16)}, {vr(vK,4)}, {vr(vQ,4)}, 0")
    a("s_nop 15")
    for i in range(8):
        a(f"v_max3_f32 v{mx}, v{S+2*i}, v{S+2*i+1}, v{mx}")
    a(f"s_add_u32 s{sIt}, s{sIt}, 1")
    a(f"s_cmp_lt_u32 s{sIt}, 64")
    a("s_cbranch_scc1 K2_SL1")
    a(f"v_mov_b32 v{mx+1}, v{mx}")
    a("s_nop 1")
    a(f"v_permlane32_swap_b32 v{mx}, v{mx+1}")
    a(f"v_max_f32 v{mx}, v{mx}, v{mx+1}")
    for i in range(16):
        a(f"v_sub_f32 v{M+i}, 0, v{mx}")
        a(f"v_mov_b32 v{vO+i}, 0")
    a(f"v_mov_b32 v{vKA}, v{vL16}")
    a(f"s_mov_b32 s{sIt}, 0")
    a.label("K2_SL2")
    a(f"ds_read_b128 {vr(vK,4)}, v{vKA}")
    a(f"s_mov_b64 exec, {sr(sVM,2)}")
    a(f"ds_read_b128 {vr(vV[0],4)}, v{vKA} offset:1024")
    a(f"ds_read_b128 {vr(vV[1],4)}, v{vKA} offset:1280")
    a("s_mov_b64 exec, -1")
    a(f"v_add_u32 v{vKA}, 0x800, v{vKA}")
    a("s_waitcnt lgkmcnt(0)")
    a(f"{MFMA} {vr(S,16)}, {vr(vK,4)}, {vr(vQ,4)}, {vr(M,16)}")
    a("s_nop 15")
    for i in range(16):
        a(f"v_exp_f32 v{S+i}, v{S+i}")
    a("s_nop 0")
    for i in range(8):
        a(f"v_cvt_pk_bf16_f32 v{vP+i}, v{S+2*i}, v{S+2*i+1}")
    a("s_nop 1")
    a(f"{MFMA} {vr(vO,16)}, {vr(vV[0],4)}, {vr(vP,4)}, {vr(vO,16)}")
    a(f"{MFMA} {vr(vO,16)}, {vr(vV[1],4)}, {vr(vP+4,4)}, {vr(vO,16)}")
    a(f"s_add_u32 s{sIt}, s{sIt}, 1")
    a(f"s_cmp_lt_u32 s{sIt}, 64")
    a("s_nop 7")
    a("s_cbranch_scc1 K2_SL2")
    a("s_nop 7")
    a(f"v_rcp_f32 v{mx}, v{vO+8}")
    a("s_nop 0")
    for i in range(8):
        a(f"v_mul_f32 v{vO+i}, v{mx}, v{vO+i}")
    a("s_branch K2_OST")
    return name, nv


K3_LDS = 131072


def gen_k3(a):
    name = "k3_kernel"
    header(a, name)
    SWS, SX, SO = 4, 8, 12
    sW, sRT, sCG, sT0, sT1, sT2, sG, sStep, sXo = 50, 51, 52, 53, 54, 55, 56, 57, 58
    va = VAlloc(1)
    vL = va()
    vL16 = va()
    vT = va(4, 4)
    vXo = va()
    vAA, vBA = va(), va()
    vG = va(8, 4)
    vX = va(8, 4)
    vA = [va(4) for _ in range(4)]
    vB = [va(4) for _ in range(4)]
    vAcc = va(16, 16)
    vU = va(16, 4)
    nv = va.n
    a("s_cmp_ge_u32 s2, 256")
    a("s_cbranch_scc1 K3_END")
    a("s_load_dwordx2 s[32:33], s[0:1], 0")
    a("s_load_dwordx2 s[34:35], s[0:1], 64")
    a("s_load_dwordx2 s[36:37], s[0:1], 80")
    a(f"v_lshrrev_b32 v{vT}, 6, v0")
    a(f"v_and_b32 v{vL}, 63, v0")
    a(f"v_readfirstlane_b32 s{sW}, v{vT}")
    a(f"v_lshlrev_b32 v{vL16}, 4, v{vL}")
    a(f"s_and_b32 s{sT0}, s2, 7")
    a(f"s_lshr_b32 s{sT1}, s2, 3")
    a(f"s_lshr_b32 s{sRT}, s{sT0}, 1")
    a(f"s_lshl_b32 s{sRT}, s{sRT}, 3")
    a(f"s_and_b32 s{sT2}, s{sT1}, 7")
    a(f"s_add_u32 s{sRT}, s{sRT}, s{sT2}")
    a(f"s_and_b32 s{sCG}, s{sT0}, 1")
    a(f"s_lshl_b32 s{sCG}, s{sCG}, 2")
    a(f"s_lshr_b32 s{sT2}, s{sT1}, 3")
    a(f"s_add_u32 s{sCG}, s{sCG}, s{sT2}")
    a(f"s_lshl_b32 s{sT0}, s{sRT}, 1")
    a(f"s_add_u32 s{sT0}, s{sT0}, s{sW}")
    a(f"s_lshl_b32 s{sT0}, s{sT0}, 15")
    a(f"s_add_u32 s{sT0}, s{sT0}, {OF:#x}")
    a(f"s_lshl_b32 s{sT1}, s{sCG}, 1")
    a(f"s_add_u32 s{sT1}, s{sT1}, s{sW}")
    a(f"s_lshl_b32 s{sT1}, s{sT1}, 10")
    a(f"s_add_u32 s{sT1}, s{sT1}, {WOF - 2048:#x}")
    a(f"s_movk_i32 s{sStep}, 1024")
    a(f"s_cmp_lt_u32 s{sW}, 2")
    a(f"s_cselect_b32 s{sG}, s{sT0}, s{sT1}")
    a(f"s_cselect_b32 s{sStep}, s{sStep}, 16384")
    a(f"s_lshl_b32 s{sT0}, s{sW}, 10")
    a(f"s_mov_b32 m0, s{sT0}")
    a(f"v_and_b32 v{vT}, 31, v{vL}")
    a(f"v_lshrrev_b32 v{vT+1}, 5, v{vL}")
    a(f"v_lshlrev_b32 v{vT+1}, 4, v{vT+1}")
    a(f"v_lshl_add_u32 v{vXo}, v{vT}, 10, v{vT+1}")
    a(f"s_lshl_b32 s{sXo}, s{sRT}, 16")
    a(f"s_lshr_b32 s{sT0}, s{sW}, 1")
    a(f"s_lshl_b32 s{sT1}, s{sT0}, 15")
    a(f"s_add_u32 s{sXo}, s{sXo}, s{sT1}")
    a(f"s_lshl_b32 s{sT1}, s{sCG}, 7")
    a(f"s_add_u32 s{sXo}, s{sXo}, s{sT1}")
    a(f"s_and_b32 s{sT1}, s{sW}, 1")
    a(f"s_lshl_b32 s{sT2}, s{sT1}, 6")
    a(f"s_add_u32 s{sXo}, s{sXo}, s{sT2}")
    a(f"s_lshl_b32 s{sT0}, s{sT0}, 10")
    a(f"v_add_u32 v{vBA}, s{sT0}, v{vL16}")
    a(f"s_lshl_b32 s{sT1}, s{sT1}, 10")
    a(f"s_add_u32 s{sT1}, s{sT1}, 2048")
    a(f"v_add_u32 v{vAA}, s{sT1}, v{vL16}")
    a(f"s_lshl_b32 s{sT0}, s{sRT}, 3")
    a(f"s_add_u32 s{sT0}, s{sT0}, s{sCG}")
    a(f"s_lshl_b32 s{sT0}, s{sT0}, 13")
    a(f"s_lshl_b32 s{sT1}, s{sW}, 11")
    a(f"s_add_u32 s{sT0}, s{sT0}, s{sT1}")
    a(f"s_add_u32 s{sT0}, s{sT0}, {GF:#x}")
    a("s_waitcnt lgkmcnt(0)")
    srd(a, SWS, 36, WS_SIZE)
    srd(a, SX, 32, 2048 * 1024)
    srd(a, SO, 34, 2048 * 1024)
    stamp(a, 2, 0, SWS, sW, vU)
    for ks in range(32):
        a(f"buffer_load_dwordx4 v{vL16}, {sr(SWS,4)}, s{sG} offen lds")
        a(f"s_add_u32 m0, m0, 0x1000")
        a(f"s_add_u32 s{sG}, s{sG}, s{sStep}")
    a(f"buffer_load_dwordx4 {vr(vG,4)}, v{vL16}, {sr(SWS,4)}, s{sT0} offen")
    a(f"buffer_load_dwordx4 {vr(vG+4,4)}, v{vL16}, {sr(SWS,4)}, s{sT0} offen offset:1024")
    a(f"buffer_load_dwordx4 {vr(vX,4)}, v{vXo}, {sr(SX,4)}, s{sXo} offen")
    a(f"buffer_load_dwordx4 {vr(vX+4,4)}, v{vXo}, {sr(SX,4)}, s{sXo} offen offset:32")
    for i in range(16):
        a(f"v_mov_b32 v{vAcc+i}, 0")
    for st in range(4):
        a(f"s_waitcnt vmcnt({28 - 8*st})")
        a("s_barrier")
        if st == 2:
            a(f"v_add_u32 v{vAA}, 0x10000, v{vAA}")
            a(f"v_add_u32 v{vBA}, 0x10000, v{vBA}")
        base = (st & 1) * 8

        def rd(k):
            a(f"ds_read_b128 {vr(vA[k&3],4)}, v{vAA} offset:{(base+k)*4096}")
            a(f"ds_read_b128 {vr(vB[k&3],4)}, v{vBA} offset:{(base+k)*4096}")
        for k in range(4):
            rd(k)
        for k in range(8):
            rem = min(3, 7 - k)
            a(f"s_waitcnt lgkmcnt({2*rem})")
            a(f"{MFMA} {vr(vAcc,16)}, {vr(vA[k&3],4)}, {vr(vB[k&3],4)}, {vr(vAcc,16)}")
            if k + 4 < 8:
                rd(k + 4)
    a("s_waitcnt vmcnt(0)")
    for p in range(2):
        a(f"v_permlane32_swap_b32 v{vX+4*p}, v{vX+4*p+2}")
        a(f"v_permlane32_swap_b32 v{vX+4*p+1}, v{vX+4*p+3}")
    for i in range(8):
        a(f"v_lshlrev_b32 v{vU+2*i}, 16, v{vX+i}")
        a(f"v_and_b32 v{vU+2*i+1}, 0xffff0000, v{vX+i}")
    for i in range(8):
        a(f"v_lshlrev_b32 v{vT}, 16, v{vG+i}")
        a(f"v_and_b32 v{vT+1}, 0xffff0000, v{vG+i}")
        a(f"v_fmac_f32 v{vU+2*i}, v{vT}, v{vAcc+2*i}")
        a(f"v_fmac_f32 v{vU+2*i+1}, v{vT+1}, v{vAcc+2*i+1}")
    for i in range(8):
        a(f"v_cvt_pk_bf16_f32 v{vX+i}, v{vU+2*i}, v{vU+2*i+1}")
    a("s_nop 1")
    for p in range(2):
        a(f"v_permlane32_swap_b32 v{vX+4*p}, v{vX+4*p+2}")
        a(f"v_permlane32_swap_b32 v{vX+4*p+1}, v{vX+4*p+3}")
    a(f"buffer_store_dwordx4 {vr(vX,4)}, v{vXo}, {sr(SO,4)}, s{sXo} offen")
    a(f"buffer_store_dwordx4 {vr(vX+4,4)}, v{vXo}, {sr(SO,4)}, s{sXo} offen offset:32")
    if PROF:
        a("s_waitcnt vmcnt(0)")
        stamp(a, 2, 3, SWS, sW, vU)
    a.label("K3_END")
    a("s_endpgm")
    return name, nv


def main():
    out = sys.argv[1] if len(sys.argv) > 1 else f"cdna_kernels/{NAME}.s"
    a = Asm()
    ks = []
    ks.append(gen_k1(a) + (512, K1_LDS))
    ks.append(gen_k2(a) + (512, K2_LDS))
    ks.append(gen_k3(a) + (256, K3_LDS))
    hdr = "; generated by gen/gen.py (hand-written generator)\n"
    for n, nv, blk, lds in ks:
        hdr += f"; @launch kernel={n} grid=(256,1,1) block=({blk},1,1) lds={lds}\n"
    hdr += '.amdgcn_target "amdgcn-amd-amdhsa--gfx950"\n.text\n'
    body = a.text()
    probs = check_hazards(body)
    for p in probs:
        print(p)
    tail = '.section .rodata,"a"\n'
    for n, nv, blk, lds in ks:
        tail += ".p2align 6\n" + descriptor(n, nv)
        print(n, "vgprs", nv)
    open(out, "w").write(hdr + body + tail)
    print("hazards:", len(probs))


if __name__ == "__main__":
    main()
```

```python
import sys, os
sys.path.insert(0, os.path.dirname(os.path.abspath(__file__)))
from asmlib import Asm, VAlloc, vr, sr, check_hazards

NAME = "recurrent_scan__softmax_full_mha__dense_activation_squared_relu__prompt"
PROF = int(os.environ.get("PROF", "0"))

QF = 0x000000
KVF = 0x200000
HF = 0x600000
W2F = 0xD00000
WOF = 0xF00000
OF = 0x1000000
GF = 0x1200000
RINV2 = 0x1400000
PROFB = 0x1800000
WS_SIZE = 0x10000000

MFMA = "v_mfma_f32_32x32x16_bf16"
MFMA16 = "v_mfma_f32_16x16x32_bf16"
LOG2E = 1.4426950408889634


def f32bits(x):
    import struct
    return struct.unpack("<I", struct.pack("<f", x))[0]


def srd(a, dst, ptr, size):
    a(f"s_mov_b32 s{dst}, s{ptr}")
    a(f"s_and_b32 s{dst+1}, s{ptr+1}, 0xffff")
    a(f"s_mov_b32 s{dst+2}, {size:#x}")
    a(f"s_mov_b32 s{dst+3}, 0x20000")


def stamp(a, kid, slot, sws, wave_s, vtmp):
    if not PROF:
        return
    a("s_memrealtime s[90:91]")
    a("s_memtime s[94:95]")
    a(f"s_lshl_b32 s92, s2, 3")
    a(f"s_add_u32 s92, s92, s{wave_s}")
    a(f"s_lshl_b32 s92, s92, 6")
    a(f"s_add_u32 s92, s92, {PROFB + kid*256*8*64 + slot*8:#x}")
    a("s_waitcnt lgkmcnt(0)")
    a(f"v_mov_b32 v{vtmp}, s90")
    a(f"v_mov_b32 v{vtmp+1}, s94")
    a(f"v_mov_b32 v{vtmp+2}, 0")
    a(f"buffer_store_dwordx2 {vr(vtmp,2)}, v{vtmp+2}, {sr(sws,4)}, s92 offen")


def header(a, name):
    a.raw(f".globl {name}")
    a.raw(".p2align 8")
    a.raw(f".type {name},@function")
    a.label(name)


def descriptor(name, nv, ns=102):
    nv = (nv + 7) // 8 * 8
    return f""".amdhsa_kernel {name}
  .amdhsa_next_free_vgpr {nv}
  .amdhsa_next_free_sgpr {ns}
  .amdhsa_accum_offset {nv}
  .amdhsa_group_segment_fixed_size 0
  .amdhsa_kernarg_size 88
  .amdhsa_user_sgpr_count 2
  .amdhsa_user_sgpr_kernarg_segment_ptr 1
  .amdhsa_system_sgpr_workgroup_id_x 1
.end_amdhsa_kernel
"""


K1_SLOT = 45056
K1_TR = 3 * K1_SLOT
K1_STAT = K1_TR + 16384
K1_WS = K1_STAT + 4096
K1_RINV = K1_WS + 3584
K1_LDS = K1_RINV + 512


def gen_k1(a):
    name = "k1_kernel"
    header(a, name)
    SX, SW, SWS, SW2, SWO, SB1 = 4, 8, 12, 16, 20, 24
    sW, sRG, sRT, sCG, sTY, sC = 50, 51, 52, 53, 54, 55
    sXoff, sWoff, sSlotX, sSlotW, sWstep, sMask = 56, 57, 58, 59, 60, 61
    sRd, sDelta, sT0, sT1, sT2, sGW, sRB, sPitch, sWr, sSlotC = 62, 63, 64, 65, 66, 67, 68, 69, 70, 71
    va = VAlloc(1)
    vL = va()
    vT = va(4, 4)
    vX0, vX1, vWg = va(), va(), va()
    vXA = [va() for _ in range(4)]
    vWA = va()
    vL16 = va()
    vSel = va(4)
    vSx, vSq = va(2, 2), va(2, 2)
    vU = va(4, 4)
    vXf = [va(4), va(4)]
    vWf = [[va(4) for _ in range(4)] for _ in range(2)]
    vWs = [va(4) for _ in range(4)]
    vEW = [va(4) for _ in range(4)]
    vEX = va(4)
    vAcc = [va(16, 16) for _ in range(4)]
    vRi = va(16, 4)
    nv = va.n

    a("s_cmp_ge_u32 s2, 256")
    a("s_cbranch_scc1 K1_END")
    a("s_load_dwordx16 s[32:47], s[0:1], 0")
    a("s_load_dwordx2 s[48:49], s[0:1], 80")
    a(f"v_lshrrev_b32 v{vT}, 6, v0")
    a(f"v_and_b32 v{vL}, 63, v0")
    a(f"v_readfirstlane_b32 s{sW}, v{vT}")
    a(f"s_and_b32 s{sT0}, s2, 7")
    a(f"s_lshr_b32 s{sT1}, s2, 3")
    a(f"s_and_b32 s{sRT}, s{sT0}, 1")
    a(f"s_lshl_b32 s{sRT}, s{sRT}, 3")
    a(f"s_and_b32 s{sT2}, s{sT1}, 7")
    a(f"s_add_u32 s{sRT}, s{sRT}, s{sT2}")
    a(f"s_lshr_b32 s{sT1}, s{sT1}, 3")
    a(f"s_and_b32 s{sTY}, s{sT1}, 1")
    a(f"s_lshr_b32 s{sT1}, s{sT1}, 1")
    a(f"s_and_b32 s{sCG}, s{sT0}, 6")
    a(f"s_add_u32 s{sCG}, s{sCG}, s{sT1}")
    a(f"s_and_b32 s{sRG}, s{sW}, 3")
    a(f"s_lshl_b32 s{sRB}, s{sRT}, 2")
    a(f"s_add_u32 s{sRB}, s{sRB}, s{sRG}")
    a(f"s_lshl_b32 s{sGW}, s2, 3")
    a(f"s_add_u32 s{sGW}, s{sGW}, s{sW}")
    a(f"s_mov_b32 s{sMask}, 0xffff0000")
    a(f"s_movk_i32 s{sPitch}, 3072")
    a(f"s_movk_i32 s{sT0}, 128")
    a(f"s_mov_b32 s{sSlotC}, {K1_SLOT}")
    a(f"s_cmp_eq_u32 s{sTY}, 0")
    a(f"s_cselect_b32 s{sPitch}, s{sPitch}, 3584")
    a(f"s_cselect_b32 s{sT0}, s{sT0}, 448")
    a(f"s_mul_i32 s{sWoff}, s{sCG}, s{sT0}")
    a(f"s_lshl_b32 s{sWstep}, s{sPitch}, 6")
    a(f"s_lshl_b32 s{sT0}, s{sRG}, 4")
    a(f"s_mul_i32 s{sT0}, s{sT0}, s{sPitch}")
    a(f"s_add_u32 s{sWoff}, s{sWoff}, s{sT0}")
    a(f"s_lshl_b32 s{sXoff}, s{sRT}, 17")
    a(f"s_lshl_b32 s{sT0}, s{sW}, 14")
    a(f"s_add_u32 s{sXoff}, s{sXoff}, s{sT0}")
    a(f"s_lshl_b32 s{sSlotX}, s{sW}, 11")
    a(f"s_lshl_b32 s{sSlotW}, s{sRG}, 10")
    a(f"v_lshrrev_b32 v{vT}, 3, v{vL}")
    a(f"v_lshrrev_b32 v{vT+1}, 4, v{vL}")
    a(f"v_and_b32 v{vT+2}, 7, v{vL}")
    a(f"v_xor_b32 v{vT+3}, v{vT+2}, v{vT+1}")
    a(f"v_lshlrev_b32 v{vT+3}, 4, v{vT+3}")
    a(f"v_lshl_add_u32 v{vX0}, v{vT}, 10, v{vT+3}")
    a(f"v_xor_b32 v{vX1}, 64, v{vX0}")
    a(f"v_add_u32 v{vX1}, 0x2000, v{vX1}")
    a(f"v_lshrrev_b32 v{vT}, 2, v{vL}")
    a(f"v_and_b32 v{vT+2}, 3, v{vL}")
    a(f"v_lshlrev_b32 v{vT+2}, 4, v{vT+2}")
    a(f"v_mad_u32_u24 v{vWg}, v{vT}, s{sPitch}, v{vT+2}")
    a(f"v_lshl_add_u32 v{vU}, v{vT}, 10, v{vT+2}")
    a(f"v_lshlrev_b32 v{vL16}, 4, v{vL}")
    a(f"v_and_b32 v{vU+1}, 31, v{vL}")
    a(f"v_lshlrev_b32 v{vU+1}, 1, v{vU+1}")
    a("s_waitcnt lgkmcnt(0)")
    srd(a, SX, 32, 2048 * 1024)
    a(f"s_cmp_eq_u32 s{sTY}, 0")
    a(f"s_cselect_b32 s{SW}, s34, s40")
    a(f"s_cselect_b32 s{SW+1}, s35, s41")
    a(f"s_and_b32 s{SW+1}, s{SW+1}, 0xffff")
    a(f"s_lshl_b32 s{SW+2}, s{sPitch}, 9")
    a(f"s_mov_b32 s{SW+3}, 0x20000")
    srd(a, SWS, 48, WS_SIZE)
    srd(a, SW2, 44, 1792 * 1024)
    srd(a, SWO, 36, 512 * 1024)
    srd(a, SB1, 42, 3584)
    stamp(a, 0, 0, SWS, sW, vAcc[3])
    a(f"s_lshr_b32 s{sT0}, s{sW}, 2")
    a(f"s_lshl_b32 s{sT1}, s{sTY}, 1")
    a(f"s_add_u32 s{sT0}, s{sT0}, s{sT1}")
    a(f"s_cmp_eq_u32 s{sT0}, 1")
    a("s_cbranch_scc1 K1_R1")
    a(f"s_cmp_eq_u32 s{sT0}, 2")
    a("s_cbranch_scc1 K1_R2")
    a(f"s_cmp_eq_u32 s{sT0}, 3")
    a("s_cbranch_scc1 K1_R3")

    roles = [
        dict(ty=0, half=0, blks=[0, 1, 2], col=[0, 64, 1024], ori="TTT", kind=["Q", "Q", "K"], sub=[0, 1, 0]),
        dict(ty=0, half=1, blks=[3, 4, 5], col=[1024 + 64, 2048, 2048 + 64], ori="TNN", kind=["K", "V", "V"], sub=[1, 0, 1]),
        dict(ty=1, half=0, blks=[0, 1, 2, 3], col=[0, 64, 128, 192], ori="TTTT", kind=["H"] * 4),
        dict(ty=1, half=1, blks=[4, 5, 6], col=[256, 320, 384], ori="TTT", kind=["H"] * 3),
    ]
    for ri, R in enumerate(roles):
        nb = len(R["blks"])
        half = R["half"]
        P = f"K1_R{ri}"
        a.label(P)

        def dma_x(i):
            return [f"s_add_u32 m0, s{sSlotX}, {i*1024}",
                    f"buffer_load_dwordx4 v{[vX0, vX1][i]}, {sr(SX,4)}, s{sXoff} offen lds"]

        def dma_w(b):
            return [f"s_add_u32 m0, s{sSlotW}, {16384 + R['blks'][b]*4096 - R['col'][b]}",
                    f"buffer_load_dwordx4 v{vWg}, {sr(SW,4)}, s{sWoff} offen offset:{R['col'][b]} lds"]

        def dma_emit(lst):
            for m, l in lst:
                a(m)
                a("s_nop 0")
                a(l)

        def dma_advance():
            a(f"s_add_u32 s{sXoff}, s{sXoff}, 128")
            a(f"s_add_u32 s{sWoff}, s{sWoff}, s{sWstep}")
            a(f"s_add_u32 s{sWr}, s{sWr}, {K1_SLOT}")
            a(f"s_cmp_eq_u32 s{sWr}, {3*K1_SLOT}")
            a(f"s_cselect_b32 s{sT0}, {-2*K1_SLOT & 0xffffffff:#x}, s{sSlotC}")
            a(f"s_cselect_b32 s{sWr}, 0, s{sWr}")
            a(f"s_add_u32 s{sSlotX}, s{sSlotX}, s{sT0}")
            a(f"s_add_u32 s{sSlotW}, s{sSlotW}, s{sT0}")

        a(f"s_mov_b32 s{sWr}, 0")
        dma_emit([dma_x(0), dma_w(0), dma_x(1)] + [dma_w(b) for b in range(1, nb)])
        dma_advance()
        if R["ty"] == 1:
            a(f"s_mul_i32 s{sT1}, s{sCG}, 448")
            for b in range(nb):
                a(f"buffer_load_ushort v{vEW[b]+1}, v{vU+1}, {sr(SB1,4)}, s{sT1} offen offset:{R['col'][b]}")
            nbias = nb
        else:
            nbias = 0
        a(f"s_lshr_b32 s{sT0}, s{sGW}, 4")
        a(f"s_lshl_b32 s{sT0}, s{sT0}, 14")
        a(f"s_and_b32 s{sT1}, s{sGW}, 15")
        a(f"s_lshl_b32 s{sT1}, s{sT1}, 6")
        a(f"s_add_u32 s{sT0}, s{sT0}, s{sT1}")
        a(f"s_lshl_b32 s{sT2}, s{sW}, 11")
        a(f"s_add_u32 m0, s{sT2}, {K1_TR}")
        a("s_nop 0")
        a(f"buffer_load_dwordx4 v{vU}, {sr(SW2,4)}, s{sT0} offen lds")
        a(f"s_lshr_b32 s{sT0}, s{sGW}, 6")
        a(f"s_lshl_b32 s{sT0}, s{sT0}, 14")
        a(f"s_lshr_b32 s{sT1}, s{sGW}, 2")
        a(f"s_and_b32 s{sT1}, s{sT1}, 15")
        a(f"s_lshl_b32 s{sT1}, s{sT1}, 6")
        a(f"s_add_u32 s{sT0}, s{sT0}, s{sT1}")
        a(f"s_cmp_eq_u32 s{sRG}, 0")
        a(f"s_cselect_b32 s{sT0}, s{sT0}, 0x100000")
        a(f"s_add_u32 m0, s{sT2}, {K1_TR + 1024}")
        a("s_nop 0")
        a(f"buffer_load_dwordx4 v{vU}, {sr(SWO,4)}, s{sT0} offen lds")
        n = 2 + nb
        for c in (1, 2):
            dma_emit([dma_x(0), dma_w(0), dma_x(1)] + [dma_w(b) for b in range(1, nb)])
            dma_advance()
        a(f"v_and_b32 v{vT}, 31, v{vL}")
        a(f"v_lshrrev_b32 v{vT+1}, 5, v{vL}")
        a(f"v_bfe_u32 v{vT+2}, v{vL}, 1, 3")
        a(f"v_xor_b32 v{vT+2}, v{vT+2}, v{vT+1}")
        a(f"v_lshlrev_b32 v{vT+2}, 4, v{vT+2}")
        a(f"v_lshl_add_u32 v{vT+2}, v{vT}, 7, v{vT+2}")
        a(f"s_lshl_b32 s{sT0}, s{sRG}, 12")
        a(f"v_add_u32 v{vXA[0]}, s{sT0}, v{vT+2}")
        for s in range(1, 4):
            a(f"v_xor_b32 v{vXA[s]}, {32*s}, v{vXA[0]}")
        a(f"v_bfe_u32 v{vT+2}, v{vL}, 2, 2")
        a(f"v_lshlrev_b32 v{vT+2}, 6, v{vT+2}")
        a(f"v_bfe_u32 v{vT+3}, v{vL}, 4, 1")
        a(f"v_lshl_add_u32 v{vT+2}, v{vT+3}, 5, v{vT+2}")
        a(f"v_and_b32 v{vT+3}, 3, v{vL}")
        a(f"v_lshl_add_u32 v{vT+2}, v{vT+3}, 3, v{vT+2}")
        a(f"v_lshl_add_u32 v{vWA}, v{vT+1}, 9, v{vT+2}")
        a(f"v_add_u32 v{vWA}, 0x4000, v{vWA}")
        a(f"v_lshl_add_u32 v{vRi}, v{vT+1}, 8, v{vT+2}")
        a(f"s_add_u32 s{sT2}, s{sT2}, {K1_TR}")
        a(f"v_add_u32 v{vRi}, s{sT2}, v{vRi}")
        a(f"v_lshrrev_b32 v{vT+2}, 4, v{vL}")
        a(f"v_lshrrev_b32 v{vT+3}, 2, v{vL}")
        a(f"v_xor_b32 v{vT+2}, v{vT+2}, v{vT+3}")
        a(f"v_and_b32 v{vT+2}, 1, v{vT+2}")
        a(f"v_and_or_b32 v{vT+2}, v{vL}, 3, v{vT+2}")
        a(f"v_cmp_eq_u32 vcc, 0, v{vT+2}")
        a(f"v_mov_b32 v{vT+3}, 0x3f803f80")
        a(f"v_mov_b32 v{vSx}, 0")
        a(f"v_cndmask_b32 v{vSel}, 0, v{vT+3}, vcc")
        for i in range(1, 4):
            a(f"v_mov_b32 v{vSel+i}, v{vSel}")
        a(f"v_mov_b32 v{vSx+1}, 0")
        a(f"v_mov_b32 v{vSq}, 0")
        a(f"v_mov_b32 v{vSq+1}, 0")
        for b in range(nb):
            for i in range(16):
                a(f"v_mov_b32 v{vAcc[b]+i}, 0")
            for i in range(4):
                a(f"v_mov_b32 v{vWs[b]+i}, 0")
            a(f"v_mov_b32 v{vEW[b]+2}, 0")
            a(f"v_mov_b32 v{vEW[b]+3}, 0")
            if R["ty"] == 0:
                a(f"v_mov_b32 v{vEW[b]+1}, 0")
        a(f"s_mov_b32 s{sC}, 0")
        a(f"s_mov_b32 s{sRd}, 0")

        def reads(s, st):
            g = []
            for b in range(nb):
                blk = R["blks"][b]
                r = []
                if b == 0:
                    r.append(f"ds_read_b128 {vr(vXf[st],4)}, v{vXA[s]}")
                for rd in range(2):
                    r.append(f"ds_read_b64_tr_b16 {vr(vWf[st][b]+2*rd,2)}, v{vWA} offset:{blk*4096 + s*1024 + rd*256}")
                g.append(r)
            return g

        def mfma(b, st, xf=None, wf=None):
            xf = vXf[st] if xf is None else xf
            wf = vWf[st][b] if wf is None else wf
            A, B = (wf, xf) if R["ori"][b] == "T" else (xf, wf)
            return f"{MFMA} {vr(vAcc[b],16)}, {vr(A,4)}, {vr(B,4)}, {vr(vAcc[b],16)}"

        def stats(st):
            o = []
            for i in range(2):
                r = vXf[st] + 2 * half + i
                t0, t1 = vU + 2 * i, vU + 2 * i + 1
                o += [f"v_and_b32 v{t0}, s{sMask}, v{r}", f"v_lshlrev_b32 v{t1}, 16, v{r}",
                      f"v_add_f32 v{vSx}, v{vSx}, v{t0}", f"v_add_f32 v{vSx+1}, v{vSx+1}, v{t1}",
                      f"v_fmac_f32 v{vSq}, v{t0}, v{t0}", f"v_fmac_f32 v{vSq+1}, v{t1}, v{t1}"]
            return o

        a(f"s_waitcnt vmcnt({2*n + 2 + nbias})")
        a("s_barrier")
        stamp(a, 0, 1, SWS, sW, vRi + 4)
        for g in reads(0, 0):
            for r in g:
                a(r)
        nr = 1 + 2 * nb
        a.label(P + "_LOOP")
        for s in range(4):
            st = s & 1
            stt = stats(st)
            per = (len(stt) + nb - 1) // nb
            if s < 3:
                nxt = reads(s + 1, st ^ 1)
                for b in range(nb):
                    a(f"s_waitcnt lgkmcnt({nr - len(nxt[b])})")
                    a(mfma(b, st))
                    for r in nxt[b]:
                        a(r)
                    for x in stt[b * per:(b + 1) * per]:
                        a(x)
                    if s == 0 and b == 0 or s == 1 and b == 0:
                        L = a.uid("K1_SK")
                        a(f"s_sub_u32 s{sT1}, s{sC}, 1")
                        a(f"s_cmp_gt_u32 s{sT1}, 4")
                        a(f"s_cbranch_scc1 {L}")
                        if s == 0:
                            dma_emit([dma_x(0), dma_w(0), dma_x(1)])
                        else:
                            dma_emit([dma_w(b2) for b2 in range(1, nb)])
                            dma_advance()
                        a.label(L)
            else:
                a("s_waitcnt lgkmcnt(0)")
                a(mfma(0, st))
                for x in stt[0:per]:
                    a(x)
                Llast = a.uid("K1_LAST")
                Lw = a.uid("K1_W")
                Lj = a.uid("K1_J")
                a(f"s_cmp_eq_u32 s{sC}, 7")
                a(f"s_cbranch_scc1 {Llast}")
                a(f"s_add_u32 s{sRd}, s{sRd}, {K1_SLOT}")
                a(f"s_cmp_eq_u32 s{sRd}, {3*K1_SLOT}")
                a(f"s_cselect_b32 s{sDelta}, {-2*K1_SLOT & 0xffffffff:#x}, s{sSlotC}")
                a(f"s_cselect_b32 s{sRd}, 0, s{sRd}")
                for k in range(4):
                    a(f"v_add_u32 v{vXA[k]}, s{sDelta}, v{vXA[k]}")
                a(f"v_add_u32 v{vWA}, s{sDelta}, v{vWA}")
                a(f"s_cmp_eq_u32 s{sC}, 6")
                a(f"s_cbranch_scc1 {Lw}")
                a(f"s_waitcnt vmcnt({n})")
                a(f"s_branch {Lj}")
                a.label(Lw)
                a("s_waitcnt vmcnt(0)")
                a.label(Lj)
                a("s_barrier")
                for g in reads(0, st ^ 1):
                    for r in g:
                        a(r)
                a.label(Llast)
                for b in range(1, nb):
                    a(mfma(b, st))
                    for x in stt[b * per:(b + 1) * per]:
                        a(x)
            L = a.uid("K1_WSK")
            a(f"s_cmp_lg_u32 s{sRG}, {s}")
            a(f"s_cbranch_scc1 {L}")
            for b in range(nb):
                a(f"{MFMA16} {vr(vWs[b],4)}, {vr(vSel,4)}, {vr(vWf[st][b],4)}, {vr(vWs[b],4)}")
            a.label(L)
        a(f"s_add_u32 s{sC}, s{sC}, 1")
        a(f"s_cmp_lt_u32 s{sC}, 8")
        a(f"s_cbranch_scc1 {P}_LOOP")
        stamp(a, 0, 2, SWS, sW, vRi + 4)
        tA, tB = vXf[0], vXf[1]
        a(f"ds_read_b64_tr_b16 {vr(tA,2)}, v{vRi}")
        a(f"ds_read_b64_tr_b16 {vr(tA+2,2)}, v{vRi} offset:512")
        a(f"ds_read_b64_tr_b16 {vr(tB,2)}, v{vRi} offset:1024")
        a(f"ds_read_b64_tr_b16 {vr(tB+2,2)}, v{vRi} offset:1536")
        a(f"v_add_f32 v{vSx}, v{vSx}, v{vSx+1}")
        a(f"v_add_f32 v{vSx+1}, v{vSq}, v{vSq+1}")
        a(f"s_lshl_b32 s{sT0}, s{sRG}, 10")
        a(f"s_add_u32 s{sT0}, s{sT0}, {K1_STAT}")
        a(f"v_lshl_add_u32 v{vT+2}, v{vT}, 5, s{sT0}")
        a(f"v_lshl_add_u32 v{vT+3}, v{vT+1}, 3, v{vT+2}")
        a(f"ds_write_b64 v{vT+3}, {vr(vSx,2)} offset:{half*16}")
        a(f"s_lshl_b32 s{sT0}, s{sRG}, 2")
        a(f"s_add_u32 s{sT0}, s{sT0}, {K1_WS}")
        a(f"v_lshl_add_u32 v{vT+3}, v{vT}, 4, s{sT0}")
        for b in range(nb):
            a(f"ds_write_b32 v{vT+3}, v{vWs[b]} offset:{R['blks'][b]*512}")
        a(f"s_lshl_b32 s{sT0}, s{sGW}, 10")
        a(f"s_add_u32 s{sT0}, s{sT0}, {W2F:#x}")
        a(f"s_lshl_b32 s{sT1}, s{sGW}, 8")
        a(f"s_add_u32 s{sT1}, s{sT1}, {WOF:#x}")
        a("s_waitcnt lgkmcnt(0)")
        a("s_barrier")
        a(f"ds_read_b128 {vr(vRi,4)}, v{vT+2}")
        a(f"ds_read_b128 {vr(vRi+4,4)}, v{vT+2} offset:16")
        a(f"v_lshlrev_b32 v{vT+3}, 4, v{vT}")
        a(f"v_add_u32 v{vT+3}, {K1_WS}, v{vT+3}")
        for b in range(nb):
            a(f"ds_read_b128 {vr(vWs[b],4)}, v{vT+3} offset:{R['blks'][b]*512}")
        a(f"buffer_store_dwordx4 {vr(tA,4)}, v{vL16}, {sr(SWS,4)}, s{sT0} offen")
        L = a.uid("K1_NOWO")
        a(f"s_cmp_lg_u32 s{sRG}, 0")
        a(f"s_cbranch_scc1 {L}")
        a(f"buffer_store_dwordx4 {vr(tB,4)}, v{vL16}, {sr(SWS,4)}, s{sT1} offen")
        a.label(L)
        a(f"s_waitcnt lgkmcnt({nb})")
        m, q = vU, vU + 1
        a(f"v_add_f32 v{m}, v{vRi}, v{vRi+2}")
        a(f"v_add_f32 v{q}, v{vRi+1}, v{vRi+3}")
        a(f"v_add_f32 v{vU+2}, v{vRi+4}, v{vRi+6}")
        a(f"v_add_f32 v{vU+3}, v{vRi+5}, v{vRi+7}")
        a(f"v_add_f32 v{m}, v{m}, v{vU+2}")
        a(f"v_add_f32 v{q}, v{q}, v{vU+3}")
        a(f"v_mul_f32 v{m}, {f32bits(1/512):#x}, v{m}")
        a(f"v_mul_f32 v{q}, {f32bits(1/512):#x}, v{q}")
        a(f"v_fma_f32 v{q}, -v{m}, v{m}, v{q}")
        a(f"v_max_f32 v{q}, 0, v{q}")
        a(f"v_cvt_pk_bf16_f32 v{q}, v{q}, v{q}")
        a(f"v_and_b32 v{q}, s{sMask}, v{q}")
        a(f"v_add_f32 v{q}, {f32bits(1e-5):#x}, v{q}")
        a(f"v_cvt_pk_bf16_f32 v{q}, v{q}, v{q}")
        a(f"v_and_b32 v{q}, s{sMask}, v{q}")
        a(f"v_sqrt_f32 v{q}, v{q}")
        a(f"v_cvt_pk_bf16_f32 v{m}, -v{m}, -v{m}")
        a(f"v_cmp_eq_u32 vcc, 0, v{vT+1}")
        a(f"v_cvt_pk_bf16_f32 v{q}, v{q}, v{q}")
        a(f"v_lshrrev_b32 v{vU+2}, 16, v{q}")
        a(f"v_and_b32 v{q}, s{sMask}, v{q}")
        a(f"v_cndmask_b32 v{vEX}, 0, v{m}, vcc")
        a(f"v_cndmask_b32 v{vEX+1}, 0, v{vU+2}, vcc")
        a(f"v_mov_b32 v{vEX+2}, 0")
        a(f"v_mov_b32 v{vEX+3}, 0")
        rinv = vSx
        a(f"v_rcp_f32 v{rinv}, v{q}")
        a("s_waitcnt lgkmcnt(0)")
        for b in range(nb):
            w = vWs[b]
            a(f"v_add_f32 v{w}, v{w}, v{w+1}")
            a(f"v_add_f32 v{w+2}, v{w+2}, v{w+3}")
            a(f"v_add_f32 v{w}, v{w}, v{w+2}")
            a(f"v_cvt_pk_bf16_f32 v{w+1}, v{w}, v{w}")
            a(f"v_and_b32 v{w+1}, s{sMask}, v{w+1}")
            a(f"v_sub_f32 v{w+2}, v{w}, v{w+1}")
            a(f"v_cvt_pk_bf16_f32 v{vEW[b]}, v{w+1}, v{w+2}")
        if "V" in R["kind"]:
            a(f"s_lshl_b32 s{sT0}, s{sRG}, 7")
            a(f"s_add_u32 s{sT0}, s{sT0}, {K1_RINV}")
            a(f"v_lshl_add_u32 v{vT+2}, v{vT}, 2, s{sT0}")
            a(f"ds_write_b32 v{vT+2}, v{rinv}")
            a(f"v_lshl_add_u32 v{vT+2}, v{vT+1}, 4, s{sT0}")
            a("s_waitcnt lgkmcnt(0)")
            for k in range(4):
                a(f"ds_read_b128 {vr(vRi+4*k,4)}, v{vT+2} offset:{32*k}")
        else:
            a("s_nop 1")
        for b in range(nb):
            a(mfma(b, 0, xf=vEX, wf=vEW[b]))
        if R["ty"] == 0:
            a(f"v_mul_f32 v{vSq}, {f32bits(0.25*LOG2E):#x}, v{rinv}")
            a(f"v_bfe_u32 v{vT+2}, v{vL}, 4, 1")
            a(f"v_lshlrev_b32 v{vT+2}, 17, v{vT+2}")
            a(f"v_lshl_add_u32 v{vT+2}, v{vT+1}, 9, v{vT+2}")
            a(f"v_and_b32 v{vT+3}, 15, v{vL}")
            a(f"v_lshl_add_u32 v{vT+2}, v{vT+3}, 4, v{vT+2}")
            a(f"s_lshl_b32 s{sT0}, s{sCG}, 18")
            a(f"s_lshl_b32 s{sT1}, s{sRB}, 10")
            a(f"s_add_u32 s{sT0}, s{sT0}, s{sT1}")
            a(f"s_lshl_b32 s{sT1}, s{sT0}, 1")
            a(f"s_add_u32 s{sT1}, s{sT1}, {KVF:#x}")
            a("s_nop 2")
            if "V" in R["kind"]:
                a("s_waitcnt lgkmcnt(0)")
        else:
            a(f"s_mul_i32 s{sT0}, s{sRB}, {112*1024}")
            a(f"s_mul_i32 s{sT1}, s{sCG}, {14*1024}")
            a(f"s_add_u32 s{sT0}, s{sT0}, s{sT1}")
            a(f"s_add_u32 s{sT0}, s{sT0}, {HF:#x}")
            if half == 0:
                L = a.uid("K1_NORI")
                a(f"s_cmp_lg_u32 s{sCG}, 0")
                a(f"s_cbranch_scc1 {L}")
                a(f"v_mul_f32 v{vSq}, v{rinv}, v{rinv}")
                a(f"v_lshlrev_b32 v{vT+2}, 2, v{vT}")
                a(f"s_lshl_b32 s{sT1}, s{sRB}, 7")
                a(f"s_add_u32 s{sT1}, s{sT1}, {RINV2:#x}")
                a(f"buffer_store_dword v{vSq}, v{vT+2}, {sr(SWS,4)}, s{sT1} offen")
                a.label(L)
            a("s_nop 7")
        for b in range(nb):
            A = vAcc[b]
            kind = R["kind"][b]
            if kind in "QK":
                sc = vSq if kind == "Q" else rinv
                for i in range(16):
                    a(f"v_mul_f32 v{A+i}, v{sc}, v{A+i}")
            elif kind == "V":
                for i in range(16):
                    a(f"v_mul_f32 v{A+i}, v{vRi+i}, v{A+i}")
            else:
                for i in range(16):
                    a(f"v_mul_f32 v{A+i}, v{A+i}, |v{A+i}|")
            for i in range(8):
                a(f"v_cvt_pk_bf16_f32 v{A+i}, v{A+2*i}, v{A+2*i+1}")
            if kind == "H":
                for i in range(8):
                    a(f"v_pk_max_i16 v{A+i}, v{A+i}, 0")
            for s in range(2):
                if kind == "Q":
                    a(f"s_add_u32 s{sT2}, s{sT0}, {QF + (2*R['sub'][b] + s)*65536:#x}")
                    a(f"buffer_store_dwordx4 {vr(A+4*s,4)}, v{vL16}, {sr(SWS,4)}, s{sT2} offen")
                elif kind == "K":
                    a(f"s_add_u32 s{sT2}, s{sT1}, {(2*R['sub'][b] + s)*131072:#x}")
                    a(f"buffer_store_dwordx4 {vr(A+4*s,4)}, v{vL16}, {sr(SWS,4)}, s{sT2} offen")
                elif kind == "V":
                    a(f"s_add_u32 s{sT2}, s{sT1}, {2*R['sub'][b]*131072:#x}")
                    a(f"buffer_store_dwordx4 {vr(A+4*s,4)}, v{vT+2}, {sr(SWS,4)}, s{sT2} offen offset:{1024 + s*256}")
                else:
                    a(f"s_add_u32 s{sT2}, s{sT0}, {R['blks'][b]*2048}")
                    a(f"buffer_store_dwordx4 {vr(A+4*s,4)}, v{vL16}, {sr(SWS,4)}, s{sT2} offen offset:{s*1024}")
        if PROF:
            a("s_waitcnt vmcnt(0)")
            stamp(a, 0, 3, SWS, sW, vRi + 4)
        a("s_endpgm")
    a.label("K1_END")
    a("s_endpgm")
    return name, nv


K2_RED = 131072
K2_LDS = K2_RED + 16384


class Cnt:
    def __init__(self):
        self.q = []

    def push(self, tag):
        self.q.append(tag)

    def need(self, tag):
        for i in range(len(self.q) - 1, -1, -1):
            if self.q[i] == tag:
                return len(self.q) - 1 - i
        raise KeyError(tag)


def gen_k2(a):
    name = "k2_kernel"
    header(a, name)
    SWS, SB2, SF = 4, 8, 12
    sW, sHead, sQB, sRT, sCG, sIt = 50, 51, 52, 53, 54, 55
    sT0, sT1, sT2, sHA, sWB, sKV = 56, 57, 58, 59, 60, 61
    sVM = 62
    sTile = 64
    va = VAlloc(1)
    vL = va()
    vL16 = va()
    vKA = va()
    vRA = va()
    vT = va(4, 4)
    vQ = va(4)
    vK = va(4)
    vV = [va(4), va(4)]
    vP = va(8, 4)
    vF = [dict(A0=va(4), A1=va(4), B0=va(4), B1=va(4)) for _ in range(2)]
    vB2 = va(4)
    vRi2 = va()
    vS = [va(16, 16), va(16, 16)]
    vO = va(16, 16)
    vAcc = [va(16, 16) for _ in range(4)]
    nv = va.n

    a("s_cmp_ge_u32 s2, 256")
    a("s_cbranch_scc1 K2_END")
    a("s_load_dwordx2 s[32:33], s[0:1], 56")
    a("s_load_dwordx2 s[34:35], s[0:1], 80")
    a(f"v_lshrrev_b32 v{vT}, 6, v0")
    a(f"v_and_b32 v{vL}, 63, v0")
    a(f"v_readfirstlane_b32 s{sW}, v{vT}")
    a(f"v_lshlrev_b32 v{vL16}, 4, v{vL}")
    a(f"s_and_b32 s{sT0}, s2, 7")
    a(f"s_lshr_b32 s{sT1}, s2, 3")
    a(f"s_lshl_b32 s{sHead}, s{sT0}, 2")
    a(f"s_and_b32 s{sT2}, s{sT1}, 3")
    a(f"s_add_u32 s{sHead}, s{sHead}, s{sT2}")
    a(f"s_lshr_b32 s{sQB}, s{sT1}, 2")
    a(f"s_lshl_b32 s{sQB}, s{sQB}, 3")
    a(f"s_add_u32 s{sQB}, s{sQB}, s{sW}")
    a(f"s_lshr_b32 s{sRT}, s{sT0}, 1")
    a(f"s_lshl_b32 s{sRT}, s{sRT}, 3")
    a(f"s_and_b32 s{sT2}, s{sT1}, 7")
    a(f"s_add_u32 s{sRT}, s{sRT}, s{sT2}")
    a(f"s_and_b32 s{sCG}, s{sT0}, 1")
    a(f"s_lshl_b32 s{sCG}, s{sCG}, 2")
    a(f"s_lshr_b32 s{sT2}, s{sT1}, 3")
    a(f"s_add_u32 s{sCG}, s{sCG}, s{sT2}")
    a(f"s_lshl_b32 s{sTile}, s{sRT}, 3")
    a(f"s_add_u32 s{sTile}, s{sTile}, s{sCG}")
    a(f"s_lshl_b32 s{sKV}, s{sHead}, 17")
    a(f"s_lshl_b32 s{sT0}, s{sW}, 10")
    a(f"s_add_u32 s{sKV}, s{sKV}, s{sT0}")
    a(f"s_add_u32 s{sKV}, s{sKV}, {KVF:#x}")
    a(f"s_mul_i32 s{sHA}, s{sRT}, {224*1024}")
    a(f"s_mul_i32 s{sT1}, s{sW}, {14*1024}")
    a(f"s_add_u32 s{sHA}, s{sHA}, s{sT1}")
    a(f"s_add_u32 s{sHA}, s{sHA}, {HF:#x}")
    a(f"s_mul_i32 s{sWB}, s{sW}, {14*16384}")
    a(f"s_lshl_b32 s{sT1}, s{sCG}, 11")
    a(f"s_add_u32 s{sWB}, s{sWB}, s{sT1}")
    a(f"s_add_u32 s{sWB}, s{sWB}, {W2F:#x}")
    a(f"s_lshl_b32 s{sT1}, s{sHead}, 16")
    a(f"s_lshl_b32 s{sT2}, s{sQB}, 10")
    a(f"s_add_u32 s{sT1}, s{sT1}, s{sT2}")
    a(f"s_mov_b32 s{sVM}, 0x0000ffff")
    a(f"s_mov_b32 s{sVM+1}, 0x0000ffff")
    a(f"s_mov_b32 m0, s{sT0}")
    a("s_waitcnt lgkmcnt(0)")
    srd(a, SWS, 34, WS_SIZE)
    srd(a, SF, 34, WS_SIZE)
    srd(a, SB2, 32, 1024)
    stamp(a, 1, 0, SWS, sW, vAcc[3])
    vm = Cnt()
    if PROF:
        vm.push("x")
    a(f"buffer_load_dwordx4 {vr(vQ,4)}, v{vL16}, {sr(SWS,4)}, s{sT1} offen")
    vm.push("Q")

    def kv_dma(i):
        a(f"buffer_load_dwordx4 v{vL16}, {sr(SWS,4)}, s{sKV} offen lds")
        a(f"s_add_u32 m0, m0, 0x2000")
        a(f"s_add_u32 s{sKV}, s{sKV}, 0x2000")
        vm.push(f"KV{i}")

    def fload(f, which):
        r = vF[f][which]
        if which == "A0":
            a(f"buffer_load_dwordx4 {vr(r,4)}, v{vL16}, {sr(SF,4)}, s{sHA} offen offset:{f*1024}")
        elif which == "A1":
            a(f"s_add_u32 s{sT0}, s{sHA}, {112*1024}")
            a(f"buffer_load_dwordx4 {vr(r,4)}, v{vL16}, {sr(SF,4)}, s{sT0} offen offset:{f*1024}")
        else:
            if f == 1:
                a(f"s_add_u32 s{sT0}, s{sWB}, 16384")
                so = sT0
            else:
                so = sWB
            a(f"buffer_load_dwordx4 {vr(r,4)}, v{vL16}, {sr(SF,4)}, s{so} offen offset:{1024 if which == 'B1' else 0}")
        vm.push(f"F{f}{which}")

    def fadvance():
        a(f"s_add_u32 s{sHA}, s{sHA}, 2048")
        a(f"s_add_u32 s{sWB}, s{sWB}, 32768")

    kv_dma(0)
    kv_dma(1)
    for f in range(2):
        for w in ("A0", "B1", "A1", "B0"):
            fload(f, w)
    fadvance()
    for i in range(2, 16):
        kv_dma(i)
    for q in range(4):
        for i in range(16):
            a(f"v_mov_b32 v{vAcc[q]+i}, 0")
    for i in range(16):
        a(f"v_mov_b32 v{vO+i}, 0")
    a(f"v_and_b32 v{vT}, 0x1b, v{vL}")
    a(f"v_cmp_eq_u32 vcc, 16, v{vT}")
    a(f"v_mov_b32 v{vT+1}, 0x3f803f80")
    a(f"v_mov_b32 v{vKA}, v{vL16}")
    a(f"v_cndmask_b32 v{vV[0]}, 0, v{vT+1}, vcc")
    for i in range(1, 4):
        a(f"v_mov_b32 v{vV[0]+i}, v{vV[0]}")
    for i in range(4):
        a(f"v_mov_b32 v{vV[1]+i}, v{vV[0]}")
    for i in range(4, 8):
        a(f"v_mov_b32 v{vP+i}, 0")
    a(f"s_lshl_b32 s{sT0}, s{sW}, 14")
    a(f"s_cmp_eq_u32 s{sW}, 7")
    a(f"s_cselect_b32 s{sT0}, {K2_RED:#x}, s{sT0}")
    a(f"v_add_u32 v{vRA}, s{sT0}, v{vL16}")
    a(f"s_waitcnt vmcnt({vm.need('KV1')}) lgkmcnt(0)")
    a("s_barrier")
    stamp(a, 1, 1, SWS, sW, vS[1])
    if PROF:
        vm.push("x")
    lg = Cnt()

    def rdK(t):
        a(f"ds_read_b128 {vr(vK,4)}, v{vKA} offset:{t*2048}")
        lg.push("K")

    def rdV(s, t):
        a(f"s_mov_b64 exec, {sr(sVM,2)}")
        a(f"ds_read_b128 {vr(vV[s],4)}, v{vKA} offset:{t*2048 + 1024 + s*256}")
        a("s_mov_b64 exec, -1")
        lg.push(f"V{s}")

    def wl(tag):
        a(f"s_waitcnt lgkmcnt({min(lg.need(tag), 15)})")

    def QK(t):
        wl("K")
        a(f"{MFMA} {vr(vS[t&1],16)}, {vr(vK,4)}, {vr(vQ,4)}, 0")

    def PV(s):
        wl(f"V{s}")
        a(f"{MFMA} {vr(vO,16)}, {vr(vV[s],4)}, {vr(vP+4*s,4)}, {vr(vO,16)}")

    FSEQ = [("A0", "B0", 0), ("A0", "B1", 1), ("A1", "B1", 3), ("A1", "B0", 2)]
    FREL = [[], ["A0"], ["B1"], ["A1", "B0"]]

    rdK(0)
    QK(0)
    rdK(1)
    rdV(1, 0)
    rdV(0, 0)
    a("s_nop 7")

    wr = []
    for q in (0, 1, 3, 2):
        for c4 in range(4):
            wr.append(f"ds_write_b128 v{vRA}, {vr(vAcc[q]+4*c4,4)} offset:{q*4096 + c4*1024}")
    rdp = []
    for w in range(8):
        base = [vT + 1, vT + 2, vT + 3][0 if w < 4 else 1 if w < 7 else 2]
        for i in range(2):
            rdp.append(f"ds_read_b128 {vr(vAcc[0]+8*w+4*i,4)}, v{base} offset:{(w & 3 if w < 7 else 0)*16384 + i*1024}")
    Z = vAcc[0]
    B = vF[0]["A0"]
    assert vF[0]["A1"] == B + 4
    gq = []
    for step in (32, 16, 8):
        for w0 in range(0, step, 8):
            for i in range(0, 8, 2):
                gq.append(f"v_pk_add_f32 {vr(Z+w0+i,2)}, {vr(Z+w0+i,2)}, {vr(Z+w0+step+i,2)}")
    gpre = []
    for i in range(4):
        gpre.append(f"v_lshlrev_b32 v{B+2*i}, 16, v{vB2+i}")
        gpre.append(f"v_and_b32 v{B+2*i+1}, 0xffff0000, v{vB2+i}")
    for i in range(8):
        gq.append(f"v_fmac_f32 v{B+i}, v{Z+i}, v{vRi2}")
    for i in range(8):
        gq.append(f"v_mul_f32 v{Z+i}, {f32bits(-LOG2E):#x}, v{B+i}")
    for i in range(8):
        gq.append(f"v_exp_f32 v{Z+i}, v{Z+i}")
    for i in range(8):
        gq.append(f"v_add_f32 v{Z+i}, 1.0, v{Z+i}")
    for i in range(8):
        gq.append(f"v_rcp_f32 v{Z+i}, v{Z+i}")
    for i in range(8):
        gq.append(f"v_mul_f32 v{Z+i}, v{Z+i}, v{B+i}")
    for i in range(4):
        gq.append(f"v_cvt_pk_bf16_f32 v{Z+i}, v{Z+2*i}, v{Z+2*i+1}")

    def tile(t, mode):
        S = vS[t & 1]
        e = lambda i: a(f"v_exp_f32 v{S+i}, v{S+i}")
        c = lambda i: a(f"v_cvt_pk_bf16_f32 v{vP+i}, v{S+2*i}, v{S+2*i+1}")
        last = mode == "last"

        def add(slot):
            if not last:
                return
            if t < 3:
                for _ in range(2 if slot < 2 or t == 0 else 1):
                    a(wr.pop(0))
                    lg.push("wr")
            elif t in (4, 5):
                for _ in range(3 if slot < 2 else 2):
                    a(rdp.pop(0))
                    lg.push("rdp")
                if t == 4 and slot == 0:
                    a(f"s_waitcnt vmcnt(0)")
                    for x in gpre:
                        a(x)
            elif t >= 6:
                if t == 6 and slot == 0:
                    wl("rdp")
                n = len(gq) if (t == 7 and slot == 1) else 16
                for _ in range(min(n, len(gq))):
                    a(gq.pop(0))
                if t == 7 and slot == 1:
                    a(f"buffer_store_dwordx4 {vr(Z,4)}, v{vT}, {sr(SWS,4)}, s{sTile} offen")
        if t == 6 and mode == "first":
            a(f"s_waitcnt vmcnt({vm.need('KV3')})")
            a("s_barrier")
        if t == 6 and mode == "mid":
            L = a.uid("K2_NB")
            a(f"s_cmp_lg_u32 s{sIt}, 1")
            a(f"s_cbranch_scc1 {L}")
            a("s_barrier")
            a.label(L)
        if last and t == 0:
            wl("V1")
            a("s_barrier")
        if last and t == 4:
            wl("wr")
            a("s_barrier")
        if not (last and t == 7):
            QK(t + 1)
            if not (last and t >= 6):
                rdK(t + 2)
        for i in range(4):
            e(i)
        add(0)
        PV(1)
        rdV(1, t)
        for i in range(4, 8):
            e(i)
        c(0); c(1); c(2); e(8); c(3); e(9); e(10)
        add(1)
        PV(0)
        if not (last and t == 7):
            rdV(0, t + 1)
        for i in range(11, 16):
            e(i)
        if not last:
            f = t >> 2
            A, B_, q = FSEQ[t & 3]
            if (t & 3) == 0:
                a(f"s_waitcnt vmcnt({vm.need(f'F{f}B0')})")
            a(f"{MFMA} {vr(vAcc[q],16)}, {vr(vF[f][B_],4)}, {vr(vF[f][A],4)}, {vr(vAcc[q],16)}")
            for w in FREL[t & 3]:
                fload(f, w)
            if t == 7:
                fadvance()
        add(2)
        c(4); c(5); c(6); c(7)

    for t in range(8):
        tile(t, "first")
    a(f"v_add_u32 v{vKA}, 0x4000, v{vKA}")
    a(f"s_mov_b32 s{sIt}, 1")
    a.label("K2_LOOP")
    a(f"s_cmp_eq_u32 s{sIt}, 6")
    a(f"s_cselect_b32 s{SF+2}, 0, s{SF+2}")
    for t in range(8):
        tile(t, "mid")
    a(f"v_add_u32 v{vKA}, 0x4000, v{vKA}")
    a(f"s_add_u32 s{sIt}, s{sIt}, 1")
    a(f"s_cmp_lt_u32 s{sIt}, 7")
    a("s_cbranch_scc1 K2_LOOP")
    a(f"v_lshrrev_b32 v{vT}, 5, v{vL}")
    a(f"v_lshlrev_b32 v{vT}, 3, v{vT}")
    a(f"s_lshl_b32 s{sT0}, s{sCG}, 7")
    a(f"s_and_b32 s{sT1}, s{sW}, 3")
    a(f"s_lshl_b32 s{sT1}, s{sT1}, 5")
    a(f"s_add_u32 s{sT0}, s{sT0}, s{sT1}")
    a(f"buffer_load_dwordx2 {vr(vB2,2)}, v{vT}, {sr(SB2,4)}, s{sT0} offen")
    a(f"buffer_load_dwordx2 {vr(vB2+2,2)}, v{vT}, {sr(SB2,4)}, s{sT0} offen offset:16")
    a(f"v_and_b32 v{vT+1}, 31, v{vL}")
    a(f"v_lshlrev_b32 v{vT+2}, 2, v{vT+1}")
    a(f"s_lshl_b32 s{sT0}, s{sRT}, 8")
    a(f"s_lshr_b32 s{sT2}, s{sW}, 2")
    a(f"s_lshl_b32 s{sT2}, s{sT2}, 7")
    a(f"s_add_u32 s{sT0}, s{sT0}, s{sT2}")
    a(f"s_add_u32 s{sT0}, s{sT0}, {RINV2:#x}")
    a(f"buffer_load_dword v{vRi2}, v{vT+2}, {sr(SWS,4)}, s{sT0} offen")
    a(f"s_lshl_b32 s{sT2}, s{sW}, 11")
    a(f"v_add_u32 v{vT+1}, s{sT2}, v{vL16}")
    a(f"v_add_u32 v{vT+2}, 0x10000, v{vT+1}")
    a(f"v_add_u32 v{vT+3}, {K2_RED:#x}, v{vT+1}")
    a(f"v_lshlrev_b32 v{vT}, 4, v0")
    a(f"s_lshl_b32 s{sTile}, s{sTile}, 13")
    a(f"s_add_u32 s{sTile}, s{sTile}, {GF:#x}")
    a(f"s_lshl_b32 s{sT0}, s{sQB}, 15")
    a(f"s_lshl_b32 s{sT1}, s{sHead}, 10")
    a(f"s_add_u32 s{sT0}, s{sT0}, s{sT1}")
    a(f"s_add_u32 s{sT0}, s{sT0}, {OF:#x}")
    a(f"s_mov_b32 s{sT1}, {f32bits(2.0**-60):#x}")
    a(f"s_mov_b32 s{sT2}, {f32bits(2.0**60):#x}")
    for t in range(8):
        tile(t, "last")
    assert not wr and not rdp and not gq
    a("s_nop 0")
    PV(1)
    stamp(a, 1, 2, SWS, sW, vS[1])
    a("s_nop 11")
    a.label("K2_OEPI")
    C = vS[1]
    a(f"v_add_f32 v{C}, |v{vO}|, |v{vO+1}|")
    a(f"v_add_f32 v{C+1}, |v{vO+2}|, |v{vO+3}|")
    a(f"v_add_f32 v{C+2}, |v{vO+4}|, |v{vO+5}|")
    a(f"v_add_f32 v{C+3}, |v{vO+6}|, |v{vO+7}|")
    a(f"v_rcp_f32 v{C+4}, v{vO+8}")
    a(f"v_add_f32 v{C}, v{C}, v{C+1}")
    a(f"v_add_f32 v{C+2}, v{C+2}, v{C+3}")
    a(f"v_cmp_le_f32 s[70:71], s{sT1}, v{vO+8}")
    a(f"v_add_f32 v{C}, v{C}, v{C+2}")
    a(f"v_cmp_ge_f32 s[72:73], s{sT2}, v{vO+8}")
    a(f"v_cmp_gt_f32 vcc, {f32bits(2.0**120):#x}, v{C}")
    for i in range(8):
        a(f"v_mul_f32 v{vO+i}, v{C+4}, v{vO+i}")
    a("s_and_b64 s[70:71], s[70:71], s[72:73]")
    a("s_and_b64 s[70:71], s[70:71], vcc")
    a("s_cmp_eq_u64 s[70:71], exec")
    a("s_cbranch_scc0 K2_SLOW")
    a.label("K2_OST")
    for i in range(4):
        a(f"v_cvt_pk_bf16_f32 v{vO+i}, v{vO+2*i}, v{vO+2*i+1}")
    a(f"buffer_store_dwordx4 {vr(vO,4)}, v{vL16}, {sr(SWS,4)}, s{sT0} offen")
    if PROF:
        a("s_waitcnt vmcnt(0)")
        stamp(a, 1, 3, SWS, sW, vAcc[0])
    a.label("K2_END")
    a("s_endpgm")
    a.label("K2_SLOW")
    S = vAcc[1]
    M = vAcc[2]
    mx = vAcc[3]
    a(f"s_lshl_b32 s{sKV}, s{sHead}, 17")
    a(f"s_add_u32 s{sKV}, s{sKV}, {KVF:#x}")
    a(f"s_mov_b32 s{sHA}, s{sKV}")
    a(f"v_mov_b32 v{mx}, 0xff800000")
    a(f"s_mov_b32 s{sIt}, 0")
    a.label("K2_SL1")
    a(f"buffer_load_dwordx4 {vr(vK,4)}, v{vL16}, {sr(SWS,4)}, s{sHA} offen")
    a(f"s_add_u32 s{sHA}, s{sHA}, 0x800")
    a("s_waitcnt vmcnt(0)")
    a(f"{MFMA} {vr(S,16)}, {vr(vK,4)}, {vr(vQ,4)}, 0")
    a("s_nop 15")
    for i in range(8):
        a(f"v_max3_f32 v{mx}, v{S+2*i}, v{S+2*i+1}, v{mx}")
    a(f"s_add_u32 s{sIt}, s{sIt}, 1")
    a(f"s_cmp_lt_u32 s{sIt}, 64")
    a("s_cbranch_scc1 K2_SL1")
    a(f"v_mov_b32 v{mx+1}, v{mx}")
    a("s_nop 1")
    a(f"v_permlane32_swap_b32 v{mx}, v{mx+1}")
    a(f"v_max_f32 v{mx}, v{mx}, v{mx+1}")
    for i in range(16):
        a(f"v_sub_f32 v{M+i}, 0, v{mx}")
        a(f"v_mov_b32 v{vO+i}, 0")
    a(f"s_mov_b32 s{sIt}, 0")
    a.label("K2_SL2")
    a(f"buffer_load_dwordx4 {vr(vK,4)}, v{vL16}, {sr(SWS,4)}, s{sKV} offen")
    a(f"s_mov_b64 exec, {sr(sVM,2)}")
    a(f"buffer_load_dwordx4 {vr(vV[0],4)}, v{vL16}, {sr(SWS,4)}, s{sKV} offen offset:1024")
    a(f"buffer_load_dwordx4 {vr(vV[1],4)}, v{vL16}, {sr(SWS,4)}, s{sKV} offen offset:1280")
    a("s_mov_b64 exec, -1")
    a(f"s_add_u32 s{sKV}, s{sKV}, 0x800")
    a("s_waitcnt vmcnt(0)")
    a(f"{MFMA} {vr(S,16)}, {vr(vK,4)}, {vr(vQ,4)}, {vr(M,16)}")
    a("s_nop 15")
    for i in range(16):
        a(f"v_exp_f32 v{S+i}, v{S+i}")
    a("s_nop 0")
    for i in range(8):
        a(f"v_cvt_pk_bf16_f32 v{vP+i}, v{S+2*i}, v{S+2*i+1}")
    a("s_nop 1")
    a(f"{MFMA} {vr(vO,16)}, {vr(vV[0],4)}, {vr(vP,4)}, {vr(vO,16)}")
    a(f"{MFMA} {vr(vO,16)}, {vr(vV[1],4)}, {vr(vP+4,4)}, {vr(vO,16)}")
    a(f"s_add_u32 s{sIt}, s{sIt}, 1")
    a(f"s_cmp_lt_u32 s{sIt}, 64")
    a("s_nop 7")
    a("s_cbranch_scc1 K2_SL2")
    a("s_nop 7")
    a(f"v_rcp_f32 v{mx}, v{vO+8}")
    a("s_nop 0")
    for i in range(8):
        a(f"v_mul_f32 v{vO+i}, v{mx}, v{vO+i}")
    a("s_branch K2_OST")
    return name, nv


K3_LDS = 131072


def gen_k3(a):
    name = "k3_kernel"
    header(a, name)
    SWS, SX, SO = 4, 8, 12
    sW, sRT, sCG, sT0, sT1, sT2, sG, sStep, sXo = 50, 51, 52, 53, 54, 55, 56, 57, 58
    va = VAlloc(1)
    vL = va()
    vL16 = va()
    vT = va(4, 4)
    vXo = va()
    vAA, vBA = va(), va()
    vG = va(8, 4)
    vX = va(8, 4)
    vA = [va(4) for _ in range(4)]
    vB = [va(4) for _ in range(4)]
    vAcc = va(16, 16)
    vU = va(16, 4)
    nv = va.n
    a("s_cmp_ge_u32 s2, 256")
    a("s_cbranch_scc1 K3_END")
    a("s_load_dwordx2 s[32:33], s[0:1], 0")
    a("s_load_dwordx2 s[34:35], s[0:1], 64")
    a("s_load_dwordx2 s[36:37], s[0:1], 80")
    a(f"v_lshrrev_b32 v{vT}, 6, v0")
    a(f"v_and_b32 v{vL}, 63, v0")
    a(f"v_readfirstlane_b32 s{sW}, v{vT}")
    a(f"v_lshlrev_b32 v{vL16}, 4, v{vL}")
    a(f"s_and_b32 s{sT0}, s2, 7")
    a(f"s_lshr_b32 s{sT1}, s2, 3")
    a(f"s_lshr_b32 s{sRT}, s{sT0}, 1")
    a(f"s_lshl_b32 s{sRT}, s{sRT}, 3")
    a(f"s_and_b32 s{sT2}, s{sT1}, 7")
    a(f"s_add_u32 s{sRT}, s{sRT}, s{sT2}")
    a(f"s_and_b32 s{sCG}, s{sT0}, 1")
    a(f"s_lshl_b32 s{sCG}, s{sCG}, 2")
    a(f"s_lshr_b32 s{sT2}, s{sT1}, 3")
    a(f"s_add_u32 s{sCG}, s{sCG}, s{sT2}")
    a(f"s_lshl_b32 s{sT0}, s{sRT}, 1")
    a(f"s_add_u32 s{sT0}, s{sT0}, s{sW}")
    a(f"s_lshl_b32 s{sT0}, s{sT0}, 15")
    a(f"s_add_u32 s{sT0}, s{sT0}, {OF:#x}")
    a(f"s_lshl_b32 s{sT1}, s{sCG}, 1")
    a(f"s_add_u32 s{sT1}, s{sT1}, s{sW}")
    a(f"s_lshl_b32 s{sT1}, s{sT1}, 10")
    a(f"s_add_u32 s{sT1}, s{sT1}, {WOF - 2048:#x}")
    a(f"s_movk_i32 s{sStep}, 1024")
    a(f"s_cmp_lt_u32 s{sW}, 2")
    a(f"s_cselect_b32 s{sG}, s{sT0}, s{sT1}")
    a(f"s_cselect_b32 s{sStep}, s{sStep}, 16384")
    a(f"s_lshl_b32 s{sT0}, s{sW}, 10")
    a(f"s_mov_b32 m0, s{sT0}")
    a(f"v_and_b32 v{vT}, 31, v{vL}")
    a(f"v_lshrrev_b32 v{vT+1}, 5, v{vL}")
    a(f"v_lshlrev_b32 v{vT+1}, 4, v{vT+1}")
    a(f"v_lshl_add_u32 v{vXo}, v{vT}, 10, v{vT+1}")
    a(f"s_lshl_b32 s{sXo}, s{sRT}, 16")
    a(f"s_lshr_b32 s{sT0}, s{sW}, 1")
    a(f"s_lshl_b32 s{sT1}, s{sT0}, 15")
    a(f"s_add_u32 s{sXo}, s{sXo}, s{sT1}")
    a(f"s_lshl_b32 s{sT1}, s{sCG}, 7")
    a(f"s_add_u32 s{sXo}, s{sXo}, s{sT1}")
    a(f"s_and_b32 s{sT1}, s{sW}, 1")
    a(f"s_lshl_b32 s{sT2}, s{sT1}, 6")
    a(f"s_add_u32 s{sXo}, s{sXo}, s{sT2}")
    a(f"s_lshl_b32 s{sT0}, s{sT0}, 10")
    a(f"v_add_u32 v{vBA}, s{sT0}, v{vL16}")
    a(f"s_lshl_b32 s{sT1}, s{sT1}, 10")
    a(f"s_add_u32 s{sT1}, s{sT1}, 2048")
    a(f"v_add_u32 v{vAA}, s{sT1}, v{vL16}")
    a(f"s_lshl_b32 s{sT0}, s{sRT}, 3")
    a(f"s_add_u32 s{sT0}, s{sT0}, s{sCG}")
    a(f"s_lshl_b32 s{sT0}, s{sT0}, 13")
    a(f"s_lshl_b32 s{sT1}, s{sW}, 11")
    a(f"s_add_u32 s{sT0}, s{sT0}, s{sT1}")
    a(f"s_add_u32 s{sT0}, s{sT0}, {GF:#x}")
    a("s_waitcnt lgkmcnt(0)")
    srd(a, SWS, 36, WS_SIZE)
    srd(a, SX, 32, 2048 * 1024)
    srd(a, SO, 34, 2048 * 1024)
    stamp(a, 2, 0, SWS, sW, vU)
    for ks in range(32):
        a(f"buffer_load_dwordx4 v{vL16}, {sr(SWS,4)}, s{sG} offen lds")
        a(f"s_add_u32 m0, m0, 0x1000")
        a(f"s_add_u32 s{sG}, s{sG}, s{sStep}")
    a(f"buffer_load_dwordx4 {vr(vG,4)}, v{vL16}, {sr(SWS,4)}, s{sT0} offen")
    a(f"buffer_load_dwordx4 {vr(vG+4,4)}, v{vL16}, {sr(SWS,4)}, s{sT0} offen offset:1024")
    a(f"buffer_load_dwordx4 {vr(vX,4)}, v{vXo}, {sr(SX,4)}, s{sXo} offen")
    a(f"buffer_load_dwordx4 {vr(vX+4,4)}, v{vXo}, {sr(SX,4)}, s{sXo} offen offset:32")
    for i in range(16):
        a(f"v_mov_b32 v{vAcc+i}, 0")
    for st in range(4):
        a(f"s_waitcnt vmcnt({28 - 8*st})")
        a("s_barrier")
        if st == 2:
            a(f"v_add_u32 v{vAA}, 0x10000, v{vAA}")
            a(f"v_add_u32 v{vBA}, 0x10000, v{vBA}")
        base = (st & 1) * 8

        def rd(k):
            a(f"ds_read_b128 {vr(vA[k&3],4)}, v{vAA} offset:{(base+k)*4096}")
            a(f"ds_read_b128 {vr(vB[k&3],4)}, v{vBA} offset:{(base+k)*4096}")
        for k in range(4):
            rd(k)
        for k in range(8):
            rem = min(3, 7 - k)
            a(f"s_waitcnt lgkmcnt({2*rem})")
            a(f"{MFMA} {vr(vAcc,16)}, {vr(vA[k&3],4)}, {vr(vB[k&3],4)}, {vr(vAcc,16)}")
            if k + 4 < 8:
                rd(k + 4)
    a("s_waitcnt vmcnt(0)")
    for p in range(2):
        a(f"v_permlane32_swap_b32 v{vX+4*p}, v{vX+4*p+2}")
        a(f"v_permlane32_swap_b32 v{vX+4*p+1}, v{vX+4*p+3}")
    for i in range(8):
        a(f"v_lshlrev_b32 v{vU+2*i}, 16, v{vX+i}")
        a(f"v_and_b32 v{vU+2*i+1}, 0xffff0000, v{vX+i}")
    for i in range(8):
        a(f"v_lshlrev_b32 v{vT}, 16, v{vG+i}")
        a(f"v_and_b32 v{vT+1}, 0xffff0000, v{vG+i}")
        a(f"v_fmac_f32 v{vU+2*i}, v{vT}, v{vAcc+2*i}")
        a(f"v_fmac_f32 v{vU+2*i+1}, v{vT+1}, v{vAcc+2*i+1}")
    for i in range(8):
        a(f"v_cvt_pk_bf16_f32 v{vX+i}, v{vU+2*i}, v{vU+2*i+1}")
    a("s_nop 1")
    for p in range(2):
        a(f"v_permlane32_swap_b32 v{vX+4*p}, v{vX+4*p+2}")
        a(f"v_permlane32_swap_b32 v{vX+4*p+1}, v{vX+4*p+3}")
    a(f"buffer_store_dwordx4 {vr(vX,4)}, v{vXo}, {sr(SO,4)}, s{sXo} offen")
    a(f"buffer_store_dwordx4 {vr(vX+4,4)}, v{vXo}, {sr(SO,4)}, s{sXo} offen offset:32")
    if PROF:
        a("s_waitcnt vmcnt(0)")
        stamp(a, 2, 3, SWS, sW, vU)
    a.label("K3_END")
    a("s_endpgm")
    return name, nv


def main():
    out = sys.argv[1] if len(sys.argv) > 1 else f"cdna_kernels/{NAME}.s"
    a = Asm()
    ks = []
    ks.append(gen_k1(a) + (512, K1_LDS))
    ks.append(gen_k2(a) + (512, K2_LDS))
    ks.append(gen_k3(a) + (256, K3_LDS))
    hdr = "; generated by gen/gen.py (hand-written generator)\n"
    for n, nv, blk, lds in ks:
        hdr += f"; @launch kernel={n} grid=(256,1,1) block=({blk},1,1) lds={lds}\n"
    hdr += '.amdgcn_target "amdgcn-amd-amdhsa--gfx950"\n.text\n'
    body = a.text()
    probs = check_hazards(body)
    for p in probs:
        print(p)
    tail = '.section .rodata,"a"\n'
    for n, nv, blk, lds in ks:
        tail += ".p2align 6\n" + descriptor(n, nv)
        print(n, "vgprs", nv)
    open(out, "w").write(hdr + body + tail)
    print("hazards:", len(probs))


if __name__ == "__main__":
    main()
```

```python
import sys, os
sys.path.insert(0, os.path.dirname(os.path.abspath(__file__)))
from asmlib import Asm, VAlloc, vr, sr, check_hazards

NAME = "recurrent_scan__softmax_full_mha__dense_activation_squared_relu__prompt"
PROF = int(os.environ.get("PROF", "0"))
EXP = set(os.environ.get("EXP", "").split(","))

QF = 0x000000
KVF = 0x200000
HF = 0x600000
W2F = 0xD00000
WOF = 0xF00000
OF = 0x1000000
GF = 0x1200000
RINV2 = 0x1400000
PROFB = 0x1800000
WS_SIZE = 0x10000000

MFMA = "v_mfma_f32_32x32x16_bf16"
MFMA16 = "v_mfma_f32_16x16x32_bf16"
LOG2E = 1.4426950408889634


def f32bits(x):
    import struct
    return struct.unpack("<I", struct.pack("<f", x))[0]


def srd(a, dst, ptr, size):
    a(f"s_mov_b32 s{dst}, s{ptr}")
    a(f"s_and_b32 s{dst+1}, s{ptr+1}, 0xffff")
    a(f"s_mov_b32 s{dst+2}, {size:#x}")
    a(f"s_mov_b32 s{dst+3}, 0x20000")


def stamp(a, kid, slot, sws, wave_s, vtmp):
    if not PROF:
        return
    a("s_memrealtime s[90:91]")
    a("s_memtime s[94:95]")
    a(f"s_lshl_b32 s92, s2, 3")
    a(f"s_add_u32 s92, s92, s{wave_s}")
    a(f"s_lshl_b32 s92, s92, 6")
    a(f"s_add_u32 s92, s92, {PROFB + kid*256*8*64 + slot*8:#x}")
    a("s_waitcnt lgkmcnt(0)")
    a(f"v_mov_b32 v{vtmp}, s90")
    a(f"v_mov_b32 v{vtmp+1}, s94")
    a(f"v_mov_b32 v{vtmp+2}, 0")
    a(f"buffer_store_dwordx2 {vr(vtmp,2)}, v{vtmp+2}, {sr(sws,4)}, s92 offen")


def header(a, name):
    a.raw(f".globl {name}")
    a.raw(".p2align 8")
    a.raw(f".type {name},@function")
    a.label(name)


def descriptor(name, nv, ns=102):
    nv = (nv + 7) // 8 * 8
    return f""".amdhsa_kernel {name}
  .amdhsa_next_free_vgpr {nv}
  .amdhsa_next_free_sgpr {ns}
  .amdhsa_accum_offset {nv}
  .amdhsa_group_segment_fixed_size 0
  .amdhsa_kernarg_size 88
  .amdhsa_user_sgpr_count 2
  .amdhsa_user_sgpr_kernarg_segment_ptr 1
  .amdhsa_system_sgpr_workgroup_id_x 1
.end_amdhsa_kernel
"""


K1_SLOT = 45056
K1_TR = 3 * K1_SLOT
K1_STAT = K1_TR + 16384
K1_WS = K1_STAT + 4096
K1_RINV = K1_WS + 3584
K1_LDS = K1_RINV + 512


def gen_k1(a):
    name = "k1_kernel"
    header(a, name)
    SX, SW, SWS, SW2, SWO, SB1 = 4, 8, 12, 16, 20, 24
    sW, sRG, sRT, sCG, sTY, sC = 50, 51, 52, 53, 54, 55
    sXoff, sWoff, sSlotX, sSlotW, sWstep, sMask = 56, 57, 58, 59, 60, 61
    sRd, sDelta, sT0, sT1, sT2, sGW, sRB, sPitch, sWr, sSlotC = 62, 63, 64, 65, 66, 67, 68, 69, 70, 71
    va = VAlloc(1)
    vL = va()
    vT = va(4, 4)
    vX0, vX1, vWg = va(), va(), va()
    vXA = [va() for _ in range(4)]
    vWA = va()
    vL16 = va()
    vSel = va(4)
    vSx, vSq = va(2, 2), va(2, 2)
    vU = va(4, 4)
    vXf = [va(4), va(4)]
    vWf = [[va(4) for _ in range(4)] for _ in range(2)]
    vWs = [va(4) for _ in range(4)]
    vEW = [va(4) for _ in range(4)]
    vEX = va(4)
    vAcc = [va(16, 16) for _ in range(4)]
    vRi = va(16, 4)
    nv = va.n

    a("s_cmp_ge_u32 s2, 256")
    a("s_cbranch_scc1 K1_END")
    a("s_load_dwordx16 s[32:47], s[0:1], 0")
    a("s_load_dwordx2 s[48:49], s[0:1], 80")
    a(f"v_lshrrev_b32 v{vT}, 6, v0")
    a(f"v_and_b32 v{vL}, 63, v0")
    a(f"v_readfirstlane_b32 s{sW}, v{vT}")
    a(f"s_and_b32 s{sT0}, s2, 7")
    a(f"s_lshr_b32 s{sT1}, s2, 3")
    a(f"s_and_b32 s{sRT}, s{sT0}, 1")
    a(f"s_lshl_b32 s{sRT}, s{sRT}, 3")
    a(f"s_and_b32 s{sT2}, s{sT1}, 7")
    a(f"s_add_u32 s{sRT}, s{sRT}, s{sT2}")
    a(f"s_lshr_b32 s{sT1}, s{sT1}, 3")
    a(f"s_and_b32 s{sTY}, s{sT1}, 1")
    a(f"s_lshr_b32 s{sT1}, s{sT1}, 1")
    a(f"s_and_b32 s{sCG}, s{sT0}, 6")
    a(f"s_add_u32 s{sCG}, s{sCG}, s{sT1}")
    a(f"s_and_b32 s{sRG}, s{sW}, 3")
    a(f"s_lshl_b32 s{sRB}, s{sRT}, 2")
    a(f"s_add_u32 s{sRB}, s{sRB}, s{sRG}")
    a(f"s_lshl_b32 s{sGW}, s2, 3")
    a(f"s_add_u32 s{sGW}, s{sGW}, s{sW}")
    a(f"s_mov_b32 s{sMask}, 0xffff0000")
    a(f"s_movk_i32 s{sPitch}, 3072")
    a(f"s_movk_i32 s{sT0}, 128")
    a(f"s_mov_b32 s{sSlotC}, {K1_SLOT}")
    a(f"s_cmp_eq_u32 s{sTY}, 0")
    a(f"s_cselect_b32 s{sPitch}, s{sPitch}, 3584")
    a(f"s_cselect_b32 s{sT0}, s{sT0}, 448")
    a(f"s_mul_i32 s{sWoff}, s{sCG}, s{sT0}")
    a(f"s_lshl_b32 s{sWstep}, s{sPitch}, 6")
    a(f"s_lshl_b32 s{sT0}, s{sRG}, 4")
    a(f"s_mul_i32 s{sT0}, s{sT0}, s{sPitch}")
    a(f"s_add_u32 s{sWoff}, s{sWoff}, s{sT0}")
    a(f"s_lshl_b32 s{sXoff}, s{sRT}, 17")
    a(f"s_lshl_b32 s{sT0}, s{sW}, 14")
    a(f"s_add_u32 s{sXoff}, s{sXoff}, s{sT0}")
    a(f"s_lshl_b32 s{sSlotX}, s{sW}, 11")
    a(f"s_lshl_b32 s{sSlotW}, s{sRG}, 10")
    a(f"v_lshrrev_b32 v{vT}, 3, v{vL}")
    a(f"v_lshrrev_b32 v{vT+1}, 4, v{vL}")
    a(f"v_and_b32 v{vT+2}, 7, v{vL}")
    a(f"v_xor_b32 v{vT+3}, v{vT+2}, v{vT+1}")
    a(f"v_lshlrev_b32 v{vT+3}, 4, v{vT+3}")
    a(f"v_lshl_add_u32 v{vX0}, v{vT}, 10, v{vT+3}")
    a(f"v_xor_b32 v{vX1}, 64, v{vX0}")
    a(f"v_add_u32 v{vX1}, 0x2000, v{vX1}")
    a(f"v_lshrrev_b32 v{vT}, 2, v{vL}")
    a(f"v_and_b32 v{vT+2}, 3, v{vL}")
    a(f"v_lshlrev_b32 v{vT+2}, 4, v{vT+2}")
    a(f"v_mad_u32_u24 v{vWg}, v{vT}, s{sPitch}, v{vT+2}")
    a(f"v_lshl_add_u32 v{vU}, v{vT}, 10, v{vT+2}")
    a(f"v_lshlrev_b32 v{vL16}, 4, v{vL}")
    a(f"v_and_b32 v{vU+1}, 31, v{vL}")
    a(f"v_lshlrev_b32 v{vU+1}, 1, v{vU+1}")
    a("s_waitcnt lgkmcnt(0)")
    srd(a, SX, 32, 2048 * 1024)
    a(f"s_cmp_eq_u32 s{sTY}, 0")
    a(f"s_cselect_b32 s{SW}, s34, s40")
    a(f"s_cselect_b32 s{SW+1}, s35, s41")
    a(f"s_and_b32 s{SW+1}, s{SW+1}, 0xffff")
    a(f"s_lshl_b32 s{SW+2}, s{sPitch}, 9")
    a(f"s_mov_b32 s{SW+3}, 0x20000")
    srd(a, SWS, 48, WS_SIZE)
    srd(a, SW2, 44, 1792 * 1024)
    srd(a, SWO, 36, 512 * 1024)
    srd(a, SB1, 42, 3584)
    stamp(a, 0, 0, SWS, sW, vAcc[3])
    a(f"s_lshr_b32 s{sT0}, s{sW}, 2")
    a(f"s_lshl_b32 s{sT1}, s{sTY}, 1")
    a(f"s_add_u32 s{sT0}, s{sT0}, s{sT1}")
    a(f"s_cmp_eq_u32 s{sT0}, 1")
    a("s_cbranch_scc1 K1_R1")
    a(f"s_cmp_eq_u32 s{sT0}, 2")
    a("s_cbranch_scc1 K1_R2")
    a(f"s_cmp_eq_u32 s{sT0}, 3")
    a("s_cbranch_scc1 K1_R3")

    roles = [
        dict(ty=0, half=0, blks=[0, 1, 2], col=[0, 64, 1024], ori="TTT", kind=["Q", "Q", "K"], sub=[0, 1, 0]),
        dict(ty=0, half=1, blks=[3, 4, 5], col=[1024 + 64, 2048, 2048 + 64], ori="TNN", kind=["K", "V", "V"], sub=[1, 0, 1]),
        dict(ty=1, half=0, blks=[0, 1, 2, 3], col=[0, 64, 128, 192], ori="TTTT", kind=["H"] * 4),
        dict(ty=1, half=1, blks=[4, 5, 6], col=[256, 320, 384], ori="TTT", kind=["H"] * 3),
    ]
    for ri, R in enumerate(roles):
        nb = len(R["blks"])
        half = R["half"]
        P = f"K1_R{ri}"
        a.label(P)

        def dma_x(i):
            return [f"s_add_u32 m0, s{sSlotX}, {i*1024}",
                    f"buffer_load_dwordx4 v{[vX0, vX1][i]}, {sr(SX,4)}, s{sXoff} offen lds"]

        def dma_w(b):
            return [f"s_add_u32 m0, s{sSlotW}, {16384 + R['blks'][b]*4096 - R['col'][b]}",
                    f"buffer_load_dwordx4 v{vWg}, {sr(SW,4)}, s{sWoff} offen offset:{R['col'][b]} lds"]

        def dma_emit(lst):
            for m, l in lst:
                a(m)
                a("s_nop 0")
                a(l)

        def dma_advance():
            a(f"s_add_u32 s{sXoff}, s{sXoff}, 128")
            a(f"s_add_u32 s{sWoff}, s{sWoff}, s{sWstep}")
            a(f"s_add_u32 s{sWr}, s{sWr}, {K1_SLOT}")
            a(f"s_cmp_eq_u32 s{sWr}, {3*K1_SLOT}")
            a(f"s_cselect_b32 s{sT0}, {-2*K1_SLOT & 0xffffffff:#x}, s{sSlotC}")
            a(f"s_cselect_b32 s{sWr}, 0, s{sWr}")
            a(f"s_add_u32 s{sSlotX}, s{sSlotX}, s{sT0}")
            a(f"s_add_u32 s{sSlotW}, s{sSlotW}, s{sT0}")

        a(f"s_mov_b32 s{sWr}, 0")
        dma_emit([dma_x(0), dma_w(0), dma_x(1)] + [dma_w(b) for b in range(1, nb)])
        dma_advance()
        if R["ty"] == 1:
            a(f"s_mul_i32 s{sT1}, s{sCG}, 448")
            for b in range(nb):
                a(f"buffer_load_ushort v{vEW[b]+1}, v{vU+1}, {sr(SB1,4)}, s{sT1} offen offset:{R['col'][b]}")
            nbias = nb
        else:
            nbias = 0
        a(f"s_lshr_b32 s{sT0}, s{sGW}, 4")
        a(f"s_lshl_b32 s{sT0}, s{sT0}, 14")
        a(f"s_and_b32 s{sT1}, s{sGW}, 15")
        a(f"s_lshl_b32 s{sT1}, s{sT1}, 6")
        a(f"s_add_u32 s{sT0}, s{sT0}, s{sT1}")
        a(f"s_lshl_b32 s{sT2}, s{sW}, 11")
        a(f"s_add_u32 m0, s{sT2}, {K1_TR}")
        a("s_nop 0")
        a(f"buffer_load_dwordx4 v{vU}, {sr(SW2,4)}, s{sT0} offen lds")
        a(f"s_lshr_b32 s{sT0}, s{sGW}, 6")
        a(f"s_lshl_b32 s{sT0}, s{sT0}, 14")
        a(f"s_lshr_b32 s{sT1}, s{sGW}, 2")
        a(f"s_and_b32 s{sT1}, s{sT1}, 15")
        a(f"s_lshl_b32 s{sT1}, s{sT1}, 6")
        a(f"s_add_u32 s{sT0}, s{sT0}, s{sT1}")
        a(f"s_cmp_eq_u32 s{sRG}, 0")
        a(f"s_cselect_b32 s{sT0}, s{sT0}, 0x100000")
        a(f"s_add_u32 m0, s{sT2}, {K1_TR + 1024}")
        a("s_nop 0")
        a(f"buffer_load_dwordx4 v{vU}, {sr(SWO,4)}, s{sT0} offen lds")
        n = 2 + nb
        for c in (1, 2):
            dma_emit([dma_x(0), dma_w(0), dma_x(1)] + [dma_w(b) for b in range(1, nb)])
            dma_advance()
        a(f"v_and_b32 v{vT}, 31, v{vL}")
        a(f"v_lshrrev_b32 v{vT+1}, 5, v{vL}")
        a(f"v_bfe_u32 v{vT+2}, v{vL}, 1, 3")
        a(f"v_xor_b32 v{vT+2}, v{vT+2}, v{vT+1}")
        a(f"v_lshlrev_b32 v{vT+2}, 4, v{vT+2}")
        a(f"v_lshl_add_u32 v{vT+2}, v{vT}, 7, v{vT+2}")
        a(f"s_lshl_b32 s{sT0}, s{sRG}, 12")
        a(f"v_add_u32 v{vXA[0]}, s{sT0}, v{vT+2}")
        for s in range(1, 4):
            a(f"v_xor_b32 v{vXA[s]}, {32*s}, v{vXA[0]}")
        a(f"v_bfe_u32 v{vT+2}, v{vL}, 2, 2")
        a(f"v_lshlrev_b32 v{vT+2}, 6, v{vT+2}")
        a(f"v_bfe_u32 v{vT+3}, v{vL}, 4, 1")
        a(f"v_lshl_add_u32 v{vT+2}, v{vT+3}, 5, v{vT+2}")
        a(f"v_and_b32 v{vT+3}, 3, v{vL}")
        a(f"v_lshl_add_u32 v{vT+2}, v{vT+3}, 3, v{vT+2}")
        a(f"v_lshl_add_u32 v{vWA}, v{vT+1}, 9, v{vT+2}")
        a(f"v_add_u32 v{vWA}, 0x4000, v{vWA}")
        a(f"v_lshl_add_u32 v{vRi}, v{vT+1}, 8, v{vT+2}")
        a(f"s_add_u32 s{sT2}, s{sT2}, {K1_TR}")
        a(f"v_add_u32 v{vRi}, s{sT2}, v{vRi}")
        a(f"v_lshrrev_b32 v{vT+2}, 4, v{vL}")
        a(f"v_lshrrev_b32 v{vT+3}, 2, v{vL}")
        a(f"v_xor_b32 v{vT+2}, v{vT+2}, v{vT+3}")
        a(f"v_and_b32 v{vT+2}, 1, v{vT+2}")
        a(f"v_and_or_b32 v{vT+2}, v{vL}, 3, v{vT+2}")
        a(f"v_cmp_eq_u32 vcc, 0, v{vT+2}")
        a(f"v_mov_b32 v{vT+3}, 0x3f803f80")
        a(f"v_mov_b32 v{vSx}, 0")
        a(f"v_cndmask_b32 v{vSel}, 0, v{vT+3}, vcc")
        for i in range(1, 4):
            a(f"v_mov_b32 v{vSel+i}, v{vSel}")
        a(f"v_mov_b32 v{vSx+1}, 0")
        a(f"v_mov_b32 v{vSq}, 0")
        a(f"v_mov_b32 v{vSq+1}, 0")
        for b in range(nb):
            for i in range(16):
                a(f"v_mov_b32 v{vAcc[b]+i}, 0")
            for i in range(4):
                a(f"v_mov_b32 v{vWs[b]+i}, 0")
            a(f"v_mov_b32 v{vEW[b]+2}, 0")
            a(f"v_mov_b32 v{vEW[b]+3}, 0")
            if R["ty"] == 0:
                a(f"v_mov_b32 v{vEW[b]+1}, 0")
        a(f"s_mov_b32 s{sC}, 0")
        a(f"s_mov_b32 s{sRd}, 0")

        def reads(s, st):
            g = []
            for b in range(nb):
                blk = R["blks"][b]
                r = []
                if b == 0:
                    r.append(f"ds_read_b128 {vr(vXf[st],4)}, v{vXA[s]}")
                for rd in range(2 if ("nowrd" not in EXP or b == 0) else 0):
                    r.append(f"ds_read_b64_tr_b16 {vr(vWf[st][b]+2*rd,2)}, v{vWA} offset:{blk*4096 + s*1024 + rd*256}")
                g.append(r)
            return g

        def mfma(b, st, xf=None, wf=None):
            xf = vXf[st] if xf is None else xf
            wf = vWf[st][b] if wf is None else wf
            A, B = (wf, xf) if R["ori"][b] == "T" else (xf, wf)
            if "nomfma" in EXP:
                return "s_nop 0"
            return f"{MFMA} {vr(vAcc[b],16)}, {vr(A,4)}, {vr(B,4)}, {vr(vAcc[b],16)}"

        def stats(st):
            o = []
            if "nostats" in EXP:
                return o
            for i in range(2):
                r = vXf[st] + 2 * half + i
                t0, t1 = vU + 2 * i, vU + 2 * i + 1
                o += [f"v_and_b32 v{t0}, s{sMask}, v{r}", f"v_lshlrev_b32 v{t1}, 16, v{r}",
                      f"v_add_f32 v{vSx}, v{vSx}, v{t0}", f"v_add_f32 v{vSx+1}, v{vSx+1}, v{t1}",
                      f"v_fmac_f32 v{vSq}, v{t0}, v{t0}", f"v_fmac_f32 v{vSq+1}, v{t1}, v{t1}"]
            return o

        a(f"s_waitcnt vmcnt({2*n + 2 + nbias})")
        a("s_barrier")
        stamp(a, 0, 1, SWS, sW, vRi + 4)
        for g in reads(0, 0):
            for r in g:
                a(r)
        nr = 1 + 2 * nb if "nowrd" not in EXP else 3
        a.label(P + "_LOOP")
        for s in range(4):
            st = s & 1
            stt = stats(st)
            per = (len(stt) + nb - 1) // nb
            if s < 3:
                nxt = reads(s + 1, st ^ 1)
                for b in range(nb):
                    a(f"s_waitcnt lgkmcnt({nr - len(nxt[b])})")
                    a(mfma(b, st))
                    for r in nxt[b]:
                        a(r)
                    for x in stt[b * per:(b + 1) * per]:
                        a(x)
                    if s == 0 and b == 0 or s == 1 and b == 0:
                        L = a.uid("K1_SK")
                        a(f"s_sub_u32 s{sT1}, s{sC}, 1")
                        a(f"s_cmp_gt_u32 s{sT1}, {4 if 'nodma' not in EXP else 0}")
                        a(f"s_cbranch_scc1 {L}")
                        if s == 0:
                            dma_emit([dma_x(0), dma_w(0), dma_x(1)])
                        else:
                            dma_emit([dma_w(b2) for b2 in range(1, nb)])
                            dma_advance()
                        a.label(L)
            else:
                a("s_waitcnt lgkmcnt(0)")
                a(mfma(0, st))
                for x in stt[0:per]:
                    a(x)
                Llast = a.uid("K1_LAST")
                Lw = a.uid("K1_W")
                Lj = a.uid("K1_J")
                a(f"s_cmp_eq_u32 s{sC}, 7")
                a(f"s_cbranch_scc1 {Llast}")
                a(f"s_add_u32 s{sRd}, s{sRd}, {K1_SLOT}")
                a(f"s_cmp_eq_u32 s{sRd}, {3*K1_SLOT}")
                a(f"s_cselect_b32 s{sDelta}, {-2*K1_SLOT & 0xffffffff:#x}, s{sSlotC}")
                a(f"s_cselect_b32 s{sRd}, 0, s{sRd}")
                for k in range(4):
                    a(f"v_add_u32 v{vXA[k]}, s{sDelta}, v{vXA[k]}")
                a(f"v_add_u32 v{vWA}, s{sDelta}, v{vWA}")
                a(f"s_cmp_eq_u32 s{sC}, 6")
                a(f"s_cbranch_scc1 {Lw}")
                a(f"s_waitcnt vmcnt({n})")
                a(f"s_branch {Lj}")
                a.label(Lw)
                a("s_waitcnt vmcnt(0)")
                a.label(Lj)
                a("s_barrier")
                for g in reads(0, st ^ 1):
                    for r in g:
                        a(r)
                a.label(Llast)
                for b in range(1, nb):
                    a(mfma(b, st))
                    for x in stt[b * per:(b + 1) * per]:
                        a(x)
            L = a.uid("K1_WSK")
            a(f"s_cmp_lg_u32 s{sRG}, {s}")
            a(f"s_cbranch_scc1 {L}")
            for b in range(nb):
                a(f"{MFMA16} {vr(vWs[b],4)}, {vr(vSel,4)}, {vr(vWf[st][b],4)}, {vr(vWs[b],4)}")
            a.label(L)
        a(f"s_add_u32 s{sC}, s{sC}, 1")
        a(f"s_cmp_lt_u32 s{sC}, 8")
        a(f"s_cbranch_scc1 {P}_LOOP")
        stamp(a, 0, 2, SWS, sW, vRi + 4)
        tA, tB = vXf[0], vXf[1]
        a(f"ds_read_b64_tr_b16 {vr(tA,2)}, v{vRi}")
        a(f"ds_read_b64_tr_b16 {vr(tA+2,2)}, v{vRi} offset:512")
        a(f"ds_read_b64_tr_b16 {vr(tB,2)}, v{vRi} offset:1024")
        a(f"ds_read_b64_tr_b16 {vr(tB+2,2)}, v{vRi} offset:1536")
        a(f"v_add_f32 v{vSx}, v{vSx}, v{vSx+1}")
        a(f"v_add_f32 v{vSx+1}, v{vSq}, v{vSq+1}")
        a(f"s_lshl_b32 s{sT0}, s{sRG}, 10")
        a(f"s_add_u32 s{sT0}, s{sT0}, {K1_STAT}")
        a(f"v_lshl_add_u32 v{vT+2}, v{vT}, 5, s{sT0}")
        a(f"v_lshl_add_u32 v{vT+3}, v{vT+1}, 3, v{vT+2}")
        a(f"ds_write_b64 v{vT+3}, {vr(vSx,2)} offset:{half*16}")
        a(f"s_lshl_b32 s{sT0}, s{sRG}, 2")
        a(f"s_add_u32 s{sT0}, s{sT0}, {K1_WS}")
        a(f"v_lshl_add_u32 v{vT+3}, v{vT}, 4, s{sT0}")
        for b in range(nb):
            a(f"ds_write_b32 v{vT+3}, v{vWs[b]} offset:{R['blks'][b]*512}")
        a(f"s_lshl_b32 s{sT0}, s{sGW}, 10")
        a(f"s_add_u32 s{sT0}, s{sT0}, {W2F:#x}")
        a(f"s_lshl_b32 s{sT1}, s{sGW}, 8")
        a(f"s_add_u32 s{sT1}, s{sT1}, {WOF:#x}")
        a("s_waitcnt lgkmcnt(0)")
        a("s_barrier")
        a(f"ds_read_b128 {vr(vRi,4)}, v{vT+2}")
        a(f"ds_read_b128 {vr(vRi+4,4)}, v{vT+2} offset:16")
        a(f"v_lshlrev_b32 v{vT+3}, 4, v{vT}")
        a(f"v_add_u32 v{vT+3}, {K1_WS}, v{vT+3}")
        for b in range(nb):
            a(f"ds_read_b128 {vr(vWs[b],4)}, v{vT+3} offset:{R['blks'][b]*512}")
        a(f"buffer_store_dwordx4 {vr(tA,4)}, v{vL16}, {sr(SWS,4)}, s{sT0} offen")
        L = a.uid("K1_NOWO")
        a(f"s_cmp_lg_u32 s{sRG}, 0")
        a(f"s_cbranch_scc1 {L}")
        a(f"buffer_store_dwordx4 {vr(tB,4)}, v{vL16}, {sr(SWS,4)}, s{sT1} offen")
        a.label(L)
        a(f"s_waitcnt lgkmcnt({nb})")
        m, q = vU, vU + 1
        a(f"v_add_f32 v{m}, v{vRi}, v{vRi+2}")
        a(f"v_add_f32 v{q}, v{vRi+1}, v{vRi+3}")
        a(f"v_add_f32 v{vU+2}, v{vRi+4}, v{vRi+6}")
        a(f"v_add_f32 v{vU+3}, v{vRi+5}, v{vRi+7}")
        a(f"v_add_f32 v{m}, v{m}, v{vU+2}")
        a(f"v_add_f32 v{q}, v{q}, v{vU+3}")
        a(f"v_mul_f32 v{m}, {f32bits(1/512):#x}, v{m}")
        a(f"v_mul_f32 v{q}, {f32bits(1/512):#x}, v{q}")
        a(f"v_fma_f32 v{q}, -v{m}, v{m}, v{q}")
        a(f"v_max_f32 v{q}, 0, v{q}")
        a(f"v_cvt_pk_bf16_f32 v{q}, v{q}, v{q}")
        a(f"v_and_b32 v{q}, s{sMask}, v{q}")
        a(f"v_add_f32 v{q}, {f32bits(1e-5):#x}, v{q}")
        a(f"v_cvt_pk_bf16_f32 v{q}, v{q}, v{q}")
        a(f"v_and_b32 v{q}, s{sMask}, v{q}")
        a(f"v_sqrt_f32 v{q}, v{q}")
        a(f"v_cvt_pk_bf16_f32 v{m}, -v{m}, -v{m}")
        a(f"v_cmp_eq_u32 vcc, 0, v{vT+1}")
        a(f"v_cvt_pk_bf16_f32 v{q}, v{q}, v{q}")
        a(f"v_lshrrev_b32 v{vU+2}, 16, v{q}")
        a(f"v_and_b32 v{q}, s{sMask}, v{q}")
        a(f"v_cndmask_b32 v{vEX}, 0, v{m}, vcc")
        a(f"v_cndmask_b32 v{vEX+1}, 0, v{vU+2}, vcc")
        a(f"v_mov_b32 v{vEX+2}, 0")
        a(f"v_mov_b32 v{vEX+3}, 0")
        rinv = vSx
        a(f"v_rcp_f32 v{rinv}, v{q}")
        a("s_waitcnt lgkmcnt(0)")
        for b in range(nb):
            w = vWs[b]
            a(f"v_add_f32 v{w}, v{w}, v{w+1}")
            a(f"v_add_f32 v{w+2}, v{w+2}, v{w+3}")
            a(f"v_add_f32 v{w}, v{w}, v{w+2}")
            a(f"v_cvt_pk_bf16_f32 v{w+1}, v{w}, v{w}")
            a(f"v_and_b32 v{w+1}, s{sMask}, v{w+1}")
            a(f"v_sub_f32 v{w+2}, v{w}, v{w+1}")
            a(f"v_cvt_pk_bf16_f32 v{vEW[b]}, v{w+1}, v{w+2}")
        if "V" in R["kind"]:
            a(f"s_lshl_b32 s{sT0}, s{sRG}, 7")
            a(f"s_add_u32 s{sT0}, s{sT0}, {K1_RINV}")
            a(f"v_lshl_add_u32 v{vT+2}, v{vT}, 2, s{sT0}")
            a(f"ds_write_b32 v{vT+2}, v{rinv}")
            a(f"v_lshl_add_u32 v{vT+2}, v{vT+1}, 4, s{sT0}")
            a("s_waitcnt lgkmcnt(0)")
            for k in range(4):
                a(f"ds_read_b128 {vr(vRi+4*k,4)}, v{vT+2} offset:{32*k}")
        else:
            a("s_nop 1")
        for b in range(nb):
            a(mfma(b, 0, xf=vEX, wf=vEW[b]))
        if R["ty"] == 0:
            a(f"v_mul_f32 v{vSq}, {f32bits(0.25*LOG2E):#x}, v{rinv}")
            a(f"v_bfe_u32 v{vT+2}, v{vL}, 4, 1")
            a(f"v_lshlrev_b32 v{vT+2}, 17, v{vT+2}")
            a(f"v_lshl_add_u32 v{vT+2}, v{vT+1}, 9, v{vT+2}")
            a(f"v_and_b32 v{vT+3}, 15, v{vL}")
            a(f"v_lshl_add_u32 v{vT+2}, v{vT+3}, 4, v{vT+2}")
            a(f"s_lshl_b32 s{sT0}, s{sCG}, 18")
            a(f"s_lshl_b32 s{sT1}, s{sRB}, 10")
            a(f"s_add_u32 s{sT0}, s{sT0}, s{sT1}")
            a(f"s_lshl_b32 s{sT1}, s{sT0}, 1")
            a(f"s_add_u32 s{sT1}, s{sT1}, {KVF:#x}")
            a("s_nop 2")
            if "V" in R["kind"]:
                a("s_waitcnt lgkmcnt(0)")
        else:
            a(f"s_mul_i32 s{sT0}, s{sRB}, {112*1024}")
            a(f"s_mul_i32 s{sT1}, s{sCG}, {14*1024}")
            a(f"s_add_u32 s{sT0}, s{sT0}, s{sT1}")
            a(f"s_add_u32 s{sT0}, s{sT0}, {HF:#x}")
            if half == 0:
                L = a.uid("K1_NORI")
                a(f"s_cmp_lg_u32 s{sCG}, 0")
                a(f"s_cbranch_scc1 {L}")
                a(f"v_mul_f32 v{vSq}, v{rinv}, v{rinv}")
                a(f"v_lshlrev_b32 v{vT+2}, 2, v{vT}")
                a(f"s_lshl_b32 s{sT1}, s{sRB}, 7")
                a(f"s_add_u32 s{sT1}, s{sT1}, {RINV2:#x}")
                a(f"buffer_store_dword v{vSq}, v{vT+2}, {sr(SWS,4)}, s{sT1} offen")
                a.label(L)
            a("s_nop 7")
        for b in range(nb):
            A = vAcc[b]
            kind = R["kind"][b]
            if kind in "QK":
                sc = vSq if kind == "Q" else rinv
                for i in range(16):
                    a(f"v_mul_f32 v{A+i}, v{sc}, v{A+i}")
            elif kind == "V":
                for i in range(16):
                    a(f"v_mul_f32 v{A+i}, v{vRi+i}, v{A+i}")
            else:
                for i in range(16):
                    a(f"v_mul_f32 v{A+i}, v{A+i}, |v{A+i}|")
            for i in range(8):
                a(f"v_cvt_pk_bf16_f32 v{A+i}, v{A+2*i}, v{A+2*i+1}")
            if kind == "H":
                for i in range(8):
                    a(f"v_pk_max_i16 v{A+i}, v{A+i}, 0")
            for s in range(2):
                if kind == "Q":
                    a(f"s_add_u32 s{sT2}, s{sT0}, {QF + (2*R['sub'][b] + s)*65536:#x}")
                    a(f"buffer_store_dwordx4 {vr(A+4*s,4)}, v{vL16}, {sr(SWS,4)}, s{sT2} offen")
                elif kind == "K":
                    a(f"s_add_u32 s{sT2}, s{sT1}, {(2*R['sub'][b] + s)*131072:#x}")
                    a(f"buffer_store_dwordx4 {vr(A+4*s,4)}, v{vL16}, {sr(SWS,4)}, s{sT2} offen")
                elif kind == "V":
                    a(f"s_add_u32 s{sT2}, s{sT1}, {2*R['sub'][b]*131072:#x}")
                    a(f"buffer_store_dwordx4 {vr(A+4*s,4)}, v{vT+2}, {sr(SWS,4)}, s{sT2} offen offset:{1024 + s*256}")
                else:
                    a(f"s_add_u32 s{sT2}, s{sT0}, {R['blks'][b]*2048}")
                    a(f"buffer_store_dwordx4 {vr(A+4*s,4)}, v{vL16}, {sr(SWS,4)}, s{sT2} offen offset:{s*1024}")
        if PROF:
            a("s_waitcnt vmcnt(0)")
            stamp(a, 0, 3, SWS, sW, vRi + 4)
        a("s_endpgm")
    a.label("K1_END")
    a("s_endpgm")
    return name, nv


K2_RED = 131072
K2_LDS = K2_RED + 16384


class Cnt:
    def __init__(self):
        self.q = []

    def push(self, tag):
        self.q.append(tag)

    def need(self, tag):
        for i in range(len(self.q) - 1, -1, -1):
            if self.q[i] == tag:
                return len(self.q) - 1 - i
        raise KeyError(tag)


def gen_k2(a):
    name = "k2_kernel"
    header(a, name)
    SWS, SB2, SF = 4, 8, 12
    sW, sHead, sQB, sRT, sCG, sIt = 50, 51, 52, 53, 54, 55
    sT0, sT1, sT2, sHA, sWB, sKV = 56, 57, 58, 59, 60, 61
    sVM = 62
    sTile = 64
    va = VAlloc(1)
    vL = va()
    vL16 = va()
    vKA = va()
    vRA = va()
    vT = va(4, 4)
    vQ = va(4)
    vK = va(4)
    vV = [va(4), va(4)]
    vP = va(8, 4)
    vF = [dict(A0=va(4), A1=va(4), B0=va(4), B1=va(4)) for _ in range(2)]
    vB2 = va(4)
    vRi2 = va()
    vS = [va(16, 16), va(16, 16)]
    vO = va(16, 16)
    vAcc = [va(16, 16) for _ in range(4)]
    nv = va.n

    a("s_cmp_ge_u32 s2, 256")
    a("s_cbranch_scc1 K2_END")
    a("s_load_dwordx2 s[32:33], s[0:1], 56")
    a("s_load_dwordx2 s[34:35], s[0:1], 80")
    a(f"v_lshrrev_b32 v{vT}, 6, v0")
    a(f"v_and_b32 v{vL}, 63, v0")
    a(f"v_readfirstlane_b32 s{sW}, v{vT}")
    a(f"v_lshlrev_b32 v{vL16}, 4, v{vL}")
    a(f"s_and_b32 s{sT0}, s2, 7")
    a(f"s_lshr_b32 s{sT1}, s2, 3")
    a(f"s_lshl_b32 s{sHead}, s{sT0}, 2")
    a(f"s_and_b32 s{sT2}, s{sT1}, 3")
    a(f"s_add_u32 s{sHead}, s{sHead}, s{sT2}")
    a(f"s_lshr_b32 s{sQB}, s{sT1}, 2")
    a(f"s_lshl_b32 s{sQB}, s{sQB}, 3")
    a(f"s_add_u32 s{sQB}, s{sQB}, s{sW}")
    a(f"s_lshr_b32 s{sRT}, s{sT0}, 1")
    a(f"s_lshl_b32 s{sRT}, s{sRT}, 3")
    a(f"s_and_b32 s{sT2}, s{sT1}, 7")
    a(f"s_add_u32 s{sRT}, s{sRT}, s{sT2}")
    a(f"s_and_b32 s{sCG}, s{sT0}, 1")
    a(f"s_lshl_b32 s{sCG}, s{sCG}, 2")
    a(f"s_lshr_b32 s{sT2}, s{sT1}, 3")
    a(f"s_add_u32 s{sCG}, s{sCG}, s{sT2}")
    a(f"s_lshl_b32 s{sTile}, s{sRT}, 3")
    a(f"s_add_u32 s{sTile}, s{sTile}, s{sCG}")
    a(f"s_lshl_b32 s{sKV}, s{sHead}, 17")
    a(f"s_lshl_b32 s{sT0}, s{sW}, 10")
    a(f"s_add_u32 s{sKV}, s{sKV}, s{sT0}")
    a(f"s_add_u32 s{sKV}, s{sKV}, {KVF:#x}")
    a(f"s_mul_i32 s{sHA}, s{sRT}, {224*1024}")
    a(f"s_mul_i32 s{sT1}, s{sW}, {14*1024}")
    a(f"s_add_u32 s{sHA}, s{sHA}, s{sT1}")
    a(f"s_add_u32 s{sHA}, s{sHA}, {HF:#x}")
    a(f"s_mul_i32 s{sWB}, s{sW}, {14*16384}")
    a(f"s_lshl_b32 s{sT1}, s{sCG}, 11")
    a(f"s_add_u32 s{sWB}, s{sWB}, s{sT1}")
    a(f"s_add_u32 s{sWB}, s{sWB}, {W2F:#x}")
    a(f"s_lshl_b32 s{sT1}, s{sHead}, 16")
    a(f"s_lshl_b32 s{sT2}, s{sQB}, 10")
    a(f"s_add_u32 s{sT1}, s{sT1}, s{sT2}")
    a(f"s_mov_b32 s{sVM}, 0x0000ffff")
    a(f"s_mov_b32 s{sVM+1}, 0x0000ffff")
    a(f"s_mov_b32 m0, s{sT0}")
    a("s_waitcnt lgkmcnt(0)")
    srd(a, SWS, 34, WS_SIZE)
    srd(a, SF, 34, WS_SIZE)
    srd(a, SB2, 32, 1024)
    stamp(a, 1, 0, SWS, sW, vAcc[3])
    vm = Cnt()
    if PROF:
        vm.push("x")
    a(f"buffer_load_dwordx4 {vr(vQ,4)}, v{vL16}, {sr(SWS,4)}, s{sT1} offen")
    vm.push("Q")

    def kv_dma(i):
        a(f"buffer_load_dwordx4 v{vL16}, {sr(SWS,4)}, s{sKV} offen lds")
        a(f"s_add_u32 m0, m0, 0x2000")
        a(f"s_add_u32 s{sKV}, s{sKV}, 0x2000")
        vm.push(f"KV{i}")

    def fload(f, which):
        r = vF[f][which]
        if which == "A0":
            a(f"buffer_load_dwordx4 {vr(r,4)}, v{vL16}, {sr(SF,4)}, s{sHA} offen offset:{f*1024}")
        elif which == "A1":
            a(f"s_add_u32 s{sT0}, s{sHA}, {112*1024}")
            a(f"buffer_load_dwordx4 {vr(r,4)}, v{vL16}, {sr(SF,4)}, s{sT0} offen offset:{f*1024}")
        else:
            if f == 1:
                a(f"s_add_u32 s{sT0}, s{sWB}, 16384")
                so = sT0
            else:
                so = sWB
            a(f"buffer_load_dwordx4 {vr(r,4)}, v{vL16}, {sr(SF,4)}, s{so} offen offset:{1024 if which == 'B1' else 0}")
        vm.push(f"F{f}{which}")

    def fadvance():
        a(f"s_add_u32 s{sHA}, s{sHA}, 2048")
        a(f"s_add_u32 s{sWB}, s{sWB}, 32768")

    kv_dma(0)
    kv_dma(1)
    for f in range(2):
        for w in ("A0", "B1", "A1", "B0"):
            fload(f, w)
    fadvance()
    for i in range(2, 16):
        kv_dma(i)
    for q in range(4):
        for i in range(16):
            a(f"v_mov_b32 v{vAcc[q]+i}, 0")
    for i in range(16):
        a(f"v_mov_b32 v{vO+i}, 0")
    a(f"v_and_b32 v{vT}, 0x1b, v{vL}")
    a(f"v_cmp_eq_u32 vcc, 16, v{vT}")
    a(f"v_mov_b32 v{vT+1}, 0x3f803f80")
    a(f"v_mov_b32 v{vKA}, v{vL16}")
    a(f"v_cndmask_b32 v{vV[0]}, 0, v{vT+1}, vcc")
    for i in range(1, 4):
        a(f"v_mov_b32 v{vV[0]+i}, v{vV[0]}")
    for i in range(4):
        a(f"v_mov_b32 v{vV[1]+i}, v{vV[0]}")
    for i in range(4, 8):
        a(f"v_mov_b32 v{vP+i}, 0")
    a(f"s_lshl_b32 s{sT0}, s{sW}, 14")
    a(f"s_cmp_eq_u32 s{sW}, 7")
    a(f"s_cselect_b32 s{sT0}, {K2_RED:#x}, s{sT0}")
    a(f"v_add_u32 v{vRA}, s{sT0}, v{vL16}")
    a(f"s_waitcnt vmcnt({vm.need('KV1')}) lgkmcnt(0)")
    a("s_barrier")
    stamp(a, 1, 1, SWS, sW, vS[1])
    if PROF:
        vm.push("x")
    lg = Cnt()
    if "prio" in EXP:
        a(f"s_cmp_lt_u32 s{sW}, 4")
        a("s_cbranch_scc1 K2_NOPRIO")
        a("s_setprio 1")
        a.label("K2_NOPRIO")

    def rdK(t):
        a(f"ds_read_b128 {vr(vK,4)}, v{vKA} offset:{t*2048}")
        lg.push("K")

    def rdV(s, t):
        if "nov" in EXP:
            lg.push(f"V{s}")
            lg.q.insert(0, lg.q.pop())
            return
        if "noexec" not in EXP:
            a(f"s_mov_b64 exec, {sr(sVM,2)}")
        a(f"ds_read_b128 {vr(vV[s],4)}, v{vKA} offset:{t*2048 + 1024 + s*256}")
        if "noexec" not in EXP:
            a("s_mov_b64 exec, -1")
        lg.push(f"V{s}")

    def wl(tag):
        a(f"s_waitcnt lgkmcnt({min(lg.need(tag), 15)})")

    def QK(t):
        wl("K")
        a(f"{MFMA} {vr(vS[t&1],16)}, {vr(vK,4)}, {vr(vQ,4)}, 0")

    def PV(s):
        wl(f"V{s}")
        if "nopv" in EXP:
            return
        a(f"{MFMA} {vr(vO,16)}, {vr(vV[s],4)}, {vr(vP+4*s,4)}, {vr(vO,16)}")

    FSEQ = [("A0", "B0", 0), ("A0", "B1", 1), ("A1", "B1", 3), ("A1", "B0", 2)]
    FREL = [[], ["A0"], ["B1"], ["A1", "B0"]]

    rdK(0)
    QK(0)
    rdK(1)
    rdV(1, 0)
    rdV(0, 0)
    a("s_nop 7")

    wr = []
    for q in (0, 1, 3, 2):
        for c4 in range(4):
            wr.append(f"ds_write_b128 v{vRA}, {vr(vAcc[q]+4*c4,4)} offset:{q*4096 + c4*1024}")
    rdp = []
    for w in range(8):
        base = [vT + 1, vT + 2, vT + 3][0 if w < 4 else 1 if w < 7 else 2]
        for i in range(2):
            rdp.append(f"ds_read_b128 {vr(vAcc[0]+8*w+4*i,4)}, v{base} offset:{(w & 3 if w < 7 else 0)*16384 + i*1024}")
    Z = vAcc[0]
    B = vF[0]["A0"]
    assert vF[0]["A1"] == B + 4
    gq = []
    for step in (32, 16, 8):
        for w0 in range(0, step, 8):
            for i in range(0, 8, 2):
                gq.append(f"v_pk_add_f32 {vr(Z+w0+i,2)}, {vr(Z+w0+i,2)}, {vr(Z+w0+step+i,2)}")
    gpre = []
    for i in range(4):
        gpre.append(f"v_lshlrev_b32 v{B+2*i}, 16, v{vB2+i}")
        gpre.append(f"v_and_b32 v{B+2*i+1}, 0xffff0000, v{vB2+i}")
    for i in range(8):
        gq.append(f"v_fmac_f32 v{B+i}, v{Z+i}, v{vRi2}")
    for i in range(8):
        gq.append(f"v_mul_f32 v{Z+i}, {f32bits(-LOG2E):#x}, v{B+i}")
    for i in range(8):
        gq.append(f"v_exp_f32 v{Z+i}, v{Z+i}")
    for i in range(8):
        gq.append(f"v_add_f32 v{Z+i}, 1.0, v{Z+i}")
    for i in range(8):
        gq.append(f"v_rcp_f32 v{Z+i}, v{Z+i}")
    for i in range(8):
        gq.append(f"v_mul_f32 v{Z+i}, v{Z+i}, v{B+i}")
    for i in range(4):
        gq.append(f"v_cvt_pk_bf16_f32 v{Z+i}, v{Z+2*i}, v{Z+2*i+1}")

    def tile(t, mode):
        S = vS[t & 1]
        e = lambda i: a(f"v_exp_f32 v{S+i}, v{S+i}") if ("halfexp" not in EXP or i & 1) else None
        c = lambda i: a(f"v_cvt_pk_bf16_f32 v{vP+i}, v{S+2*i}, v{S+2*i+1}")
        last = mode == "last"

        def add(slot):
            if not last:
                return
            if t < 3:
                for _ in range(2 if slot < 2 or t == 0 else 1):
                    a(wr.pop(0))
                    lg.push("wr")
            elif t in (4, 5):
                for _ in range(3 if slot < 2 else 2):
                    a(rdp.pop(0))
                    lg.push("rdp")
                if t == 4 and slot == 0:
                    a(f"s_waitcnt vmcnt(0)")
                    for x in gpre:
                        a(x)
            elif t >= 6:
                if t == 6 and slot == 0:
                    wl("rdp")
                n = len(gq) if (t == 7 and slot == 1) else 16
                for _ in range(min(n, len(gq))):
                    a(gq.pop(0))
                if t == 7 and slot == 1:
                    a(f"buffer_store_dwordx4 {vr(Z,4)}, v{vT}, {sr(SWS,4)}, s{sTile} offen")
        if t == 6 and mode == "first":
            a(f"s_waitcnt vmcnt({vm.need('KV3')})")
            a("s_barrier")
        if t == 6 and mode == "mid":
            L = a.uid("K2_NB")
            a(f"s_cmp_lg_u32 s{sIt}, 1")
            a(f"s_cbranch_scc1 {L}")
            if "nof" in EXP:
                a("s_waitcnt vmcnt(0)")
            a("s_barrier")
            a.label(L)
        if last and t == 0:
            wl("V1")
            a("s_barrier")
        if last and t == 4:
            wl("wr")
            a("s_barrier")
        if not (last and t == 7):
            QK(t + 1)
            if not (last and t >= 6):
                rdK(t + 2)
        for i in range(4):
            e(i)
        add(0)
        PV(1)
        rdV(1, t)
        for i in range(4, 8):
            e(i)
        c(0); c(1); c(2); e(8); c(3); e(9); e(10)
        add(1)
        PV(0)
        if not (last and t == 7):
            rdV(0, t + 1)
        for i in range(11, 16):
            e(i)
        if not last and "nof" not in EXP:
            f = t >> 2
            A, B_, q = FSEQ[t & 3]
            if (t & 3) == 0:
                a(f"s_waitcnt vmcnt({vm.need(f'F{f}B0')})")
            a(f"{MFMA} {vr(vAcc[q],16)}, {vr(vF[f][B_],4)}, {vr(vF[f][A],4)}, {vr(vAcc[q],16)}")
            for w in FREL[t & 3]:
                fload(f, w)
            if t == 7:
                fadvance()
        add(2)
        c(4); c(5); c(6); c(7)
        if "pad" in EXP:
            for i in range(6):
                a(f"v_mov_b32 v{vB2}, v{vB2}")
        if "padn" in EXP:
            for i in range(6):
                a(f"v_nop")

    for t in range(8):
        tile(t, "first")
    a(f"v_add_u32 v{vKA}, 0x4000, v{vKA}")
    a(f"s_mov_b32 s{sIt}, 1")
    if PROF:
        a("s_memtime s[96:97]")
    a.label("K2_LOOP")
    a(f"s_cmp_eq_u32 s{sIt}, 6")
    a(f"s_cselect_b32 s{SF+2}, 0, s{SF+2}")
    for t in range(8):
        tile(t, "mid")
    a(f"v_add_u32 v{vKA}, 0x4000, v{vKA}")
    a(f"s_add_u32 s{sIt}, s{sIt}, 1")
    a(f"s_cmp_lt_u32 s{sIt}, 7")
    a("s_cbranch_scc1 K2_LOOP")
    if PROF:
        a("s_memtime s[98:99]")
    a(f"v_lshrrev_b32 v{vT}, 5, v{vL}")
    a(f"v_lshlrev_b32 v{vT}, 3, v{vT}")
    a(f"s_lshl_b32 s{sT0}, s{sCG}, 7")
    a(f"s_and_b32 s{sT1}, s{sW}, 3")
    a(f"s_lshl_b32 s{sT1}, s{sT1}, 5")
    a(f"s_add_u32 s{sT0}, s{sT0}, s{sT1}")
    a(f"buffer_load_dwordx2 {vr(vB2,2)}, v{vT}, {sr(SB2,4)}, s{sT0} offen")
    a(f"buffer_load_dwordx2 {vr(vB2+2,2)}, v{vT}, {sr(SB2,4)}, s{sT0} offen offset:16")
    a(f"v_and_b32 v{vT+1}, 31, v{vL}")
    a(f"v_lshlrev_b32 v{vT+2}, 2, v{vT+1}")
    a(f"s_lshl_b32 s{sT0}, s{sRT}, 8")
    a(f"s_lshr_b32 s{sT2}, s{sW}, 2")
    a(f"s_lshl_b32 s{sT2}, s{sT2}, 7")
    a(f"s_add_u32 s{sT0}, s{sT0}, s{sT2}")
    a(f"s_add_u32 s{sT0}, s{sT0}, {RINV2:#x}")
    a(f"buffer_load_dword v{vRi2}, v{vT+2}, {sr(SWS,4)}, s{sT0} offen")
    a(f"s_lshl_b32 s{sT2}, s{sW}, 11")
    a(f"v_add_u32 v{vT+1}, s{sT2}, v{vL16}")
    a(f"v_add_u32 v{vT+2}, 0x10000, v{vT+1}")
    a(f"v_add_u32 v{vT+3}, {K2_RED:#x}, v{vT+1}")
    a(f"v_lshlrev_b32 v{vT}, 4, v0")
    a(f"s_lshl_b32 s{sTile}, s{sTile}, 13")
    a(f"s_add_u32 s{sTile}, s{sTile}, {GF:#x}")
    a(f"s_lshl_b32 s{sT0}, s{sQB}, 15")
    a(f"s_lshl_b32 s{sT1}, s{sHead}, 10")
    a(f"s_add_u32 s{sT0}, s{sT0}, s{sT1}")
    a(f"s_add_u32 s{sT0}, s{sT0}, {OF:#x}")
    a(f"s_mov_b32 s{sT1}, {f32bits(2.0**-60):#x}")
    a(f"s_mov_b32 s{sT2}, {f32bits(2.0**60):#x}")
    for t in range(8):
        tile(t, "last")
    assert not wr and not rdp and not gq
    a("s_nop 0")
    PV(1)
    stamp(a, 1, 2, SWS, sW, vS[1])
    a("s_nop 11")
    a.label("K2_OEPI")
    C = vS[1]
    a(f"v_add_f32 v{C}, |v{vO}|, |v{vO+1}|")
    a(f"v_add_f32 v{C+1}, |v{vO+2}|, |v{vO+3}|")
    a(f"v_add_f32 v{C+2}, |v{vO+4}|, |v{vO+5}|")
    a(f"v_add_f32 v{C+3}, |v{vO+6}|, |v{vO+7}|")
    a(f"v_rcp_f32 v{C+4}, v{vO+8}")
    a(f"v_add_f32 v{C}, v{C}, v{C+1}")
    a(f"v_add_f32 v{C+2}, v{C+2}, v{C+3}")
    a(f"v_cmp_le_f32 s[70:71], s{sT1}, v{vO+8}")
    a(f"v_add_f32 v{C}, v{C}, v{C+2}")
    a(f"v_cmp_ge_f32 s[72:73], s{sT2}, v{vO+8}")
    a(f"v_cmp_gt_f32 vcc, {f32bits(2.0**120):#x}, v{C}")
    for i in range(8):
        a(f"v_mul_f32 v{vO+i}, v{C+4}, v{vO+i}")
    a("s_and_b64 s[70:71], s[70:71], s[72:73]")
    a("s_and_b64 s[70:71], s[70:71], vcc")
    a("s_cmp_eq_u64 s[70:71], exec")
    if not EXP & {"noexec", "nopv", "halfexp", "nov"}:
        a("s_cbranch_scc0 K2_SLOW")
    a.label("K2_OST")
    for i in range(4):
        a(f"v_cvt_pk_bf16_f32 v{vO+i}, v{vO+2*i}, v{vO+2*i+1}")
    a(f"buffer_store_dwordx4 {vr(vO,4)}, v{vL16}, {sr(SWS,4)}, s{sT0} offen")
    if PROF:
        a("s_waitcnt vmcnt(0)")
        stamp(a, 1, 3, SWS, sW, vAcc[0])
        a(f"v_mov_b32 v{vAcc[1]}, s96")
        a(f"v_mov_b32 v{vAcc[1]+1}, s98")
        a(f"buffer_store_dwordx2 {vr(vAcc[1],2)}, v{vAcc[0]+2}, {sr(SWS,4)}, s92 offen offset:8")
    a.label("K2_END")
    a("s_endpgm")
    a.label("K2_SLOW")
    S = vAcc[1]
    M = vAcc[2]
    mx = vAcc[3]
    a(f"s_lshl_b32 s{sKV}, s{sHead}, 17")
    a(f"s_add_u32 s{sKV}, s{sKV}, {KVF:#x}")
    a(f"s_mov_b32 s{sHA}, s{sKV}")
    a(f"v_mov_b32 v{mx}, 0xff800000")
    a(f"s_mov_b32 s{sIt}, 0")
    a.label("K2_SL1")
    a(f"buffer_load_dwordx4 {vr(vK,4)}, v{vL16}, {sr(SWS,4)}, s{sHA} offen")
    a(f"s_add_u32 s{sHA}, s{sHA}, 0x800")
    a("s_waitcnt vmcnt(0)")
    a(f"{MFMA} {vr(S,16)}, {vr(vK,4)}, {vr(vQ,4)}, 0")
    a("s_nop 15")
    for i in range(8):
        a(f"v_max3_f32 v{mx}, v{S+2*i}, v{S+2*i+1}, v{mx}")
    a(f"s_add_u32 s{sIt}, s{sIt}, 1")
    a(f"s_cmp_lt_u32 s{sIt}, 64")
    a("s_cbranch_scc1 K2_SL1")
    a(f"v_mov_b32 v{mx+1}, v{mx}")
    a("s_nop 1")
    a(f"v_permlane32_swap_b32 v{mx}, v{mx+1}")
    a(f"v_max_f32 v{mx}, v{mx}, v{mx+1}")
    for i in range(16):
        a(f"v_sub_f32 v{M+i}, 0, v{mx}")
        a(f"v_mov_b32 v{vO+i}, 0")
    a(f"s_mov_b32 s{sIt}, 0")
    a.label("K2_SL2")
    a(f"buffer_load_dwordx4 {vr(vK,4)}, v{vL16}, {sr(SWS,4)}, s{sKV} offen")
    a(f"s_mov_b64 exec, {sr(sVM,2)}")
    a(f"buffer_load_dwordx4 {vr(vV[0],4)}, v{vL16}, {sr(SWS,4)}, s{sKV} offen offset:1024")
    a(f"buffer_load_dwordx4 {vr(vV[1],4)}, v{vL16}, {sr(SWS,4)}, s{sKV} offen offset:1280")
    a("s_mov_b64 exec, -1")
    a(f"s_add_u32 s{sKV}, s{sKV}, 0x800")
    a("s_waitcnt vmcnt(0)")
    a(f"{MFMA} {vr(S,16)}, {vr(vK,4)}, {vr(vQ,4)}, {vr(M,16)}")
    a("s_nop 15")
    for i in range(16):
        a(f"v_exp_f32 v{S+i}, v{S+i}")
    a("s_nop 0")
    for i in range(8):
        a(f"v_cvt_pk_bf16_f32 v{vP+i}, v{S+2*i}, v{S+2*i+1}")
    a("s_nop 1")
    a(f"{MFMA} {vr(vO,16)}, {vr(vV[0],4)}, {vr(vP,4)}, {vr(vO,16)}")
    a(f"{MFMA} {vr(vO,16)}, {vr(vV[1],4)}, {vr(vP+4,4)}, {vr(vO,16)}")
    a(f"s_add_u32 s{sIt}, s{sIt}, 1")
    a(f"s_cmp_lt_u32 s{sIt}, 64")
    a("s_nop 7")
    a("s_cbranch_scc1 K2_SL2")
    a("s_nop 7")
    a(f"v_rcp_f32 v{mx}, v{vO+8}")
    a("s_nop 0")
    for i in range(8):
        a(f"v_mul_f32 v{vO+i}, v{mx}, v{vO+i}")
    a("s_branch K2_OST")
    return name, nv


K3_LDS = 131072


def gen_k3(a):
    name = "k3_kernel"
    header(a, name)
    SWS, SX, SO = 4, 8, 12
    sW, sRT, sCG, sT0, sT1, sT2, sG, sStep, sXo = 50, 51, 52, 53, 54, 55, 56, 57, 58
    va = VAlloc(1)
    vL = va()
    vL16 = va()
    vT = va(4, 4)
    vXo = va()
    vAA, vBA = va(), va()
    vG = va(8, 4)
    vX = va(8, 4)
    vA = [va(4) for _ in range(4)]
    vB = [va(4) for _ in range(4)]
    vAcc = va(16, 16)
    vU = va(16, 4)
    nv = va.n
    a("s_cmp_ge_u32 s2, 256")
    a("s_cbranch_scc1 K3_END")
    a("s_load_dwordx2 s[32:33], s[0:1], 0")
    a("s_load_dwordx2 s[34:35], s[0:1], 64")
    a("s_load_dwordx2 s[36:37], s[0:1], 80")
    a(f"v_lshrrev_b32 v{vT}, 6, v0")
    a(f"v_and_b32 v{vL}, 63, v0")
    a(f"v_readfirstlane_b32 s{sW}, v{vT}")
    a(f"v_lshlrev_b32 v{vL16}, 4, v{vL}")
    a(f"s_and_b32 s{sT0}, s2, 7")
    a(f"s_lshr_b32 s{sT1}, s2, 3")
    a(f"s_lshr_b32 s{sRT}, s{sT0}, 1")
    a(f"s_lshl_b32 s{sRT}, s{sRT}, 3")
    a(f"s_and_b32 s{sT2}, s{sT1}, 7")
    a(f"s_add_u32 s{sRT}, s{sRT}, s{sT2}")
    a(f"s_and_b32 s{sCG}, s{sT0}, 1")
    a(f"s_lshl_b32 s{sCG}, s{sCG}, 2")
    a(f"s_lshr_b32 s{sT2}, s{sT1}, 3")
    a(f"s_add_u32 s{sCG}, s{sCG}, s{sT2}")
    a(f"s_lshl_b32 s{sT0}, s{sRT}, 1")
    a(f"s_add_u32 s{sT0}, s{sT0}, s{sW}")
    a(f"s_lshl_b32 s{sT0}, s{sT0}, 15")
    a(f"s_add_u32 s{sT0}, s{sT0}, {OF:#x}")
    a(f"s_lshl_b32 s{sT1}, s{sCG}, 1")
    a(f"s_add_u32 s{sT1}, s{sT1}, s{sW}")
    a(f"s_lshl_b32 s{sT1}, s{sT1}, 10")
    a(f"s_add_u32 s{sT1}, s{sT1}, {WOF - 2048:#x}")
    a(f"s_movk_i32 s{sStep}, 1024")
    a(f"s_cmp_lt_u32 s{sW}, 2")
    a(f"s_cselect_b32 s{sG}, s{sT0}, s{sT1}")
    a(f"s_cselect_b32 s{sStep}, s{sStep}, 16384")
    a(f"s_lshl_b32 s{sT0}, s{sW}, 10")
    a(f"s_mov_b32 m0, s{sT0}")
    a(f"v_and_b32 v{vT}, 31, v{vL}")
    a(f"v_lshrrev_b32 v{vT+1}, 5, v{vL}")
    a(f"v_lshlrev_b32 v{vT+1}, 4, v{vT+1}")
    a(f"v_lshl_add_u32 v{vXo}, v{vT}, 10, v{vT+1}")
    a(f"s_lshl_b32 s{sXo}, s{sRT}, 16")
    a(f"s_lshr_b32 s{sT0}, s{sW}, 1")
    a(f"s_lshl_b32 s{sT1}, s{sT0}, 15")
    a(f"s_add_u32 s{sXo}, s{sXo}, s{sT1}")
    a(f"s_lshl_b32 s{sT1}, s{sCG}, 7")
    a(f"s_add_u32 s{sXo}, s{sXo}, s{sT1}")
    a(f"s_and_b32 s{sT1}, s{sW}, 1")
    a(f"s_lshl_b32 s{sT2}, s{sT1}, 6")
    a(f"s_add_u32 s{sXo}, s{sXo}, s{sT2}")
    a(f"s_lshl_b32 s{sT0}, s{sT0}, 10")
    a(f"v_add_u32 v{vBA}, s{sT0}, v{vL16}")
    a(f"s_lshl_b32 s{sT1}, s{sT1}, 10")
    a(f"s_add_u32 s{sT1}, s{sT1}, 2048")
    a(f"v_add_u32 v{vAA}, s{sT1}, v{vL16}")
    a(f"s_lshl_b32 s{sT0}, s{sRT}, 3")
    a(f"s_add_u32 s{sT0}, s{sT0}, s{sCG}")
    a(f"s_lshl_b32 s{sT0}, s{sT0}, 13")
    a(f"s_lshl_b32 s{sT1}, s{sW}, 11")
    a(f"s_add_u32 s{sT0}, s{sT0}, s{sT1}")
    a(f"s_add_u32 s{sT0}, s{sT0}, {GF:#x}")
    a("s_waitcnt lgkmcnt(0)")
    srd(a, SWS, 36, WS_SIZE)
    srd(a, SX, 32, 2048 * 1024)
    srd(a, SO, 34, 2048 * 1024)
    stamp(a, 2, 0, SWS, sW, vU)
    for ks in range(32):
        a(f"buffer_load_dwordx4 v{vL16}, {sr(SWS,4)}, s{sG} offen lds")
        a(f"s_add_u32 m0, m0, 0x1000")
        a(f"s_add_u32 s{sG}, s{sG}, s{sStep}")
    a(f"buffer_load_dwordx4 {vr(vG,4)}, v{vL16}, {sr(SWS,4)}, s{sT0} offen")
    a(f"buffer_load_dwordx4 {vr(vG+4,4)}, v{vL16}, {sr(SWS,4)}, s{sT0} offen offset:1024")
    a(f"buffer_load_dwordx4 {vr(vX,4)}, v{vXo}, {sr(SX,4)}, s{sXo} offen")
    a(f"buffer_load_dwordx4 {vr(vX+4,4)}, v{vXo}, {sr(SX,4)}, s{sXo} offen offset:32")
    for i in range(16):
        a(f"v_mov_b32 v{vAcc+i}, 0")
    for st in range(4):
        a(f"s_waitcnt vmcnt({28 - 8*st})")
        a("s_barrier")
        if st == 2:
            a(f"v_add_u32 v{vAA}, 0x10000, v{vAA}")
            a(f"v_add_u32 v{vBA}, 0x10000, v{vBA}")
        base = (st & 1) * 8

        def rd(k):
            a(f"ds_read_b128 {vr(vA[k&3],4)}, v{vAA} offset:{(base+k)*4096}")
            a(f"ds_read_b128 {vr(vB[k&3],4)}, v{vBA} offset:{(base+k)*4096}")
        for k in range(4):
            rd(k)
        for k in range(8):
            rem = min(3, 7 - k)
            a(f"s_waitcnt lgkmcnt({2*rem})")
            a(f"{MFMA} {vr(vAcc,16)}, {vr(vA[k&3],4)}, {vr(vB[k&3],4)}, {vr(vAcc,16)}")
            if k + 4 < 8:
                rd(k + 4)
    a("s_waitcnt vmcnt(0)")
    for p in range(2):
        a(f"v_permlane32_swap_b32 v{vX+4*p}, v{vX+4*p+2}")
        a(f"v_permlane32_swap_b32 v{vX+4*p+1}, v{vX+4*p+3}")
    for i in range(8):
        a(f"v_lshlrev_b32 v{vU+2*i}, 16, v{vX+i}")
        a(f"v_and_b32 v{vU+2*i+1}, 0xffff0000, v{vX+i}")
    for i in range(8):
        a(f"v_lshlrev_b32 v{vT}, 16, v{vG+i}")
        a(f"v_and_b32 v{vT+1}, 0xffff0000, v{vG+i}")
        a(f"v_fmac_f32 v{vU+2*i}, v{vT}, v{vAcc+2*i}")
        a(f"v_fmac_f32 v{vU+2*i+1}, v{vT+1}, v{vAcc+2*i+1}")
    for i in range(8):
        a(f"v_cvt_pk_bf16_f32 v{vX+i}, v{vU+2*i}, v{vU+2*i+1}")
    a("s_nop 1")
    for p in range(2):
        a(f"v_permlane32_swap_b32 v{vX+4*p}, v{vX+4*p+2}")
        a(f"v_permlane32_swap_b32 v{vX+4*p+1}, v{vX+4*p+3}")
    a(f"buffer_store_dwordx4 {vr(vX,4)}, v{vXo}, {sr(SO,4)}, s{sXo} offen")
    a(f"buffer_store_dwordx4 {vr(vX+4,4)}, v{vXo}, {sr(SO,4)}, s{sXo} offen offset:32")
    if PROF:
        a("s_waitcnt vmcnt(0)")
        stamp(a, 2, 3, SWS, sW, vU)
    a.label("K3_END")
    a("s_endpgm")
    return name, nv


def main():
    out = sys.argv[1] if len(sys.argv) > 1 else f"cdna_kernels/{NAME}.s"
    a = Asm()
    ks = []
    ks.append(gen_k1(a) + (512, K1_LDS))
    ks.append(gen_k2(a) + (512, K2_LDS))
    ks.append(gen_k3(a) + (256, K3_LDS))
    hdr = "; generated by gen/gen.py (hand-written generator)\n"
    for n, nv, blk, lds in ks:
        hdr += f"; @launch kernel={n} grid=(256,1,1) block=({blk},1,1) lds={lds}\n"
    hdr += '.amdgcn_target "amdgcn-amd-amdhsa--gfx950"\n.text\n'
    body = a.text()
    probs = check_hazards(body)
    for p in probs:
        print(p)
    tail = '.section .rodata,"a"\n'
    for n, nv, blk, lds in ks:
        tail += ".p2align 6\n" + descriptor(n, nv)
        print(n, "vgprs", nv)
    open(out, "w").write(hdr + body + tail)
    print("hazards:", len(probs))


if __name__ == "__main__":
    main()
```

```python
import sys, os
sys.path.insert(0, os.path.dirname(os.path.abspath(__file__)))
os.environ["PROF"] = "1"
import gen as G
from gen import *

OPT = dict(kv.split("=") for kv in os.environ.get("OPT", "").split(",") if kv)
QB = int(OPT.get("qb", 2))
CONST = int(OPT.get("const", 1))
PRIO = OPT.get("prio", "dyn")
ALIGN = int(OPT.get("align", 0))
ORD = OPT.get("ord", "a")
TP = 2080 if CONST else 2048
PROG = 64 * TP
CMB = PROG + 2048
ATT_LDS = CMB + 8 * 3072


def gen_att(a):
    name = "k2_kernel"
    header(a, name)
    SWS = 4
    sW, sHead, sQB, sIt = 50, 51, 52, 55
    sT0, sT1, sT2, sKV = 56, 57, 58, 61
    sVM = 62
    sHi = 66
    va = VAlloc(1)
    vL, vL16, vKA, vVA0, vVA1, vPW, vPR, vPP = [va() for _ in range(8)]
    vT = va(4, 4)
    vQ = [va(4) for _ in range(QB)]
    vK = va(4)
    vV = [va(4), va(4)]
    vP = va(8, 4)
    vS = [va(16, 16), va(16, 16)]
    vO = [va(16, 16) for _ in range(QB)]
    vX = va(16, 16)
    nv = max(va.n, 136)

    a("s_cmp_ge_u32 s2, 256")
    a("s_cbranch_scc1 K2_END")
    a("s_load_dwordx2 s[34:35], s[0:1], 80")
    a(f"v_lshrrev_b32 v{vT}, 6, v0")
    a(f"v_and_b32 v{vL}, 63, v0")
    a(f"v_readfirstlane_b32 s{sW}, v{vT}")
    a(f"v_lshlrev_b32 v{vL16}, 4, v{vL}")
    a(f"s_and_b32 s{sT0}, s2, 7")
    a(f"s_lshr_b32 s{sT1}, s2, 3")
    a(f"s_lshl_b32 s{sHead}, s{sT0}, 2")
    a(f"s_and_b32 s{sT2}, s{sT1}, 3")
    a(f"s_add_u32 s{sHead}, s{sHead}, s{sT2}")
    a(f"s_lshr_b32 s{sQB}, s{sT1}, 2")
    a(f"s_lshl_b32 s{sQB}, s{sQB}, 3")
    if QB == 1:
        a(f"s_add_u32 s{sQB}, s{sQB}, s{sW}")
    else:
        a(f"s_and_b32 s{sT2}, s{sW}, 3")
        a(f"s_lshl_b32 s{sT2}, s{sT2}, 1")
        a(f"s_add_u32 s{sQB}, s{sQB}, s{sT2}")
    a(f"s_lshl_b32 s{sKV}, s{sHead}, 17")
    a(f"s_lshl_b32 s{sT0}, s{sW}, 10")
    a(f"s_add_u32 s{sKV}, s{sKV}, s{sT0}")
    a(f"s_add_u32 s{sKV}, s{sKV}, {KVF:#x}")
    a(f"s_lshl_b32 s{sT1}, s{sHead}, 16")
    a(f"s_lshl_b32 s{sT2}, s{sQB}, 10")
    a(f"s_add_u32 s{sT1}, s{sT1}, s{sT2}")
    a(f"s_mov_b32 s{sVM}, 0x0000ffff")
    a(f"s_mov_b32 s{sVM+1}, 0x0000ffff")
    a(f"s_lshr_b32 s{sT0}, s{sW}, 1")
    a(f"s_mul_i32 s{sT0}, s{sT0}, {TP}")
    a(f"s_and_b32 s{sT2}, s{sW}, 1")
    a(f"s_lshl_b32 s{sT2}, s{sT2}, 10")
    a(f"s_add_u32 m0, s{sT0}, s{sT2}")
    a(f"s_cmp_ge_u32 s{sW}, 4")
    a(f"s_cselect_b64 {sr(sHi,2)}, -1, 0")
    a("s_waitcnt lgkmcnt(0)")
    srd(a, SWS, 34, WS_SIZE)
    stamp(a, 1, 0, SWS, sW, vX)
    for q in range(QB):
        a(f"buffer_load_dwordx4 {vr(vQ[q],4)}, v{vL16}, {sr(SWS,4)}, s{sT1} offen offset:{q*1024}")
    for i in range(16):
        a(f"buffer_load_dwordx4 v{vL16}, {sr(SWS,4)}, s{sKV} offen lds")
        a(f"s_add_u32 m0, m0, {4*TP}")
        a(f"s_add_u32 s{sKV}, s{sKV}, 0x2000")
    for q in range(QB):
        for i in range(16):
            a(f"v_mov_b32 v{vO[q]+i}, 0")
    a(f"v_and_b32 v{vT}, 0x1b, v{vL}")
    a(f"v_cmp_eq_u32 vcc, 16, v{vT}")
    a(f"v_mov_b32 v{vT+1}, 0x3f803f80")
    a(f"v_mov_b32 v{vKA}, v{vL16}")
    a(f"v_cndmask_b32 v{vV[0]}, 0, v{vT+1}, vcc")
    for i in range(1, 4):
        a(f"v_mov_b32 v{vV[0]+i}, v{vV[0]}")
    for i in range(4):
        a(f"v_mov_b32 v{vV[1]+i}, v{vV[0]}")
    for i in range(4, 8):
        a(f"v_mov_b32 v{vP+i}, 0")
    a(f"v_add_u32 v{vVA0}, 1024, v{vL16}")
    a(f"v_add_u32 v{vVA1}, 1280, v{vL16}")
    if CONST:
        a(f"v_mov_b32 v{vT+2}, 2064")
        a(f"v_cndmask_b32 v{vT+2}, v{vT+2}, v{vT+2}, vcc")
        a(f"v_mov_b32 v{vT+3}, 2048")
        a(f"v_cndmask_b32 v{vT+2}, v{vT+2}, v{vT+3}, vcc")
        a(f"v_and_b32 v{vT}, 16, v{vL}")
        a(f"v_cmp_eq_u32 vcc, 16, v{vT}")
        a("s_nop 1")
        a(f"v_cndmask_b32 v{vVA0}, v{vVA0}, v{vT+2}, vcc")
        a(f"v_cndmask_b32 v{vVA1}, v{vVA1}, v{vT+2}, vcc")
        a(f"v_lshrrev_b32 v{vT}, 1, v0")
        a(f"v_mul_u32_u24 v{vT}, {TP}, v{vT}")
        a(f"v_and_b32 v{vT+2}, 1, v0")
        a(f"v_lshl_add_u32 v{vT}, v{vT+2}, 4, v{vT}")
        a(f"v_cmp_eq_u32 vcc, 0, v{vT+2}")
        a("s_nop 1")
        a(f"v_cndmask_b32 v{vX}, 0, v{vT+1}, vcc")
        for i in range(1, 4):
            a(f"v_mov_b32 v{vX+i}, v{vX}")
        a(f"s_cmp_ge_u32 s{sW}, 2")
        a("s_cbranch_scc1 K2_NOC")
        a(f"ds_write_b128 v{vT}, {vr(vX,4)} offset:2048")
        a.label("K2_NOC")
    a(f"v_lshlrev_b32 v{vPW}, 2, v0")
    a(f"v_add_u32 v{vPW}, {PROG}, v{vPW}")
    a(f"v_xor_b32 v{vPR}, 1024, v{vPW}") if PROG % 2048 == 0 else None
    assert PROG % 2048 == 0
    a(f"ds_write_b32 v{vPW}, v{vKA}")
    if QB == 2:
        a(f"s_lshr_b32 s{sT0}, s{sW}, 2")
        a(f"s_mul_i32 s{sT0}, s{sT0}, {TP}")
    a("s_waitcnt vmcnt(0) lgkmcnt(0)")
    a("s_barrier")
    stamp(a, 1, 1, SWS, sW, vS[1])
    lg = Cnt()
    hoff = 0
    if QB == 2:
        a(f"v_add_u32 v{vKA}, s{sT0}, v{vKA}")
        a(f"v_add_u32 v{vVA0}, s{sT0}, v{vVA0}")
        a(f"v_add_u32 v{vVA1}, s{sT0}, v{vVA1}")
    TS = TP * QB

    def rdK(j):
        a(f"ds_read_b128 {vr(vK,4)}, v{vKA} offset:{j*TS}")
        lg.push("K")

    def rdV(s, j):
        if not CONST:
            a(f"s_mov_b64 exec, {sr(sVM,2)}")
        a(f"ds_read_b128 {vr(vV[s],4)}, v{[vVA0, vVA1][s]} offset:{j*TS}")
        if not CONST:
            a("s_mov_b64 exec, -1")
        lg.push(f"V{s}")

    done = set()

    def wl(tag):
        n = lg.need(tag)
        key = (tag, len(lg.q) - n)
        if key in done:
            return
        done.add(key)
        a(f"s_waitcnt lgkmcnt({min(n, 15)})")

    def QK(u):
        wl("K")
        a(f"{MFMA} {vr(vS[u&1],16)}, {vr(vK,4)}, {vr(vQ[u % QB],4)}, 0")

    def PV(s, u):
        wl(f"V{s}")
        O = vO[u % QB]
        a(f"{MFMA} {vr(O,16)}, {vr(vV[s],4)}, {vr(vP+4*s,4)}, {vr(O,16)}")

    rdK(0)
    QK(0)
    if QB == 1:
        rdK(1)
    rdV(1, 0)
    rdV(0, 0)
    a("s_nop 7")

    def unit(u, last):
        S = vS[u & 1]
        j = u // QB
        e = lambda i: a(f"v_exp_f32 v{S+i}, v{S+i}")
        c = lambda i: a(f"v_cvt_pk_bf16_f32 v{vP+i}, v{S+2*i}, v{S+2*i+1}")
        chk = PRIO.startswith("dyn") and (u == 0 or (PRIO == "dyn2" and u == 4))
        chk2 = PRIO.startswith("dyn") and (u == 1 or (PRIO == "dyn2" and u == 5))
        pv = vKA if u < 4 else vVA0
        if not (last and u == 7):
            QK(u + 1)
            if (u + 2) % QB == 0 and not (last and u >= 6):
                rdK((u + 2) // QB)
        if chk:
            a(f"ds_write_b32 v{vPW}, v{pv}")
            lg.push("pw")
            a(f"ds_read_b32 v{vPP}, v{vPR}")
            lg.push("pp")
        for i in range(4):
            e(i)
        PV(1, u - 1)
        if u % QB == 0:
            rdV(1, j)
        if chk2:
            wl("pp")
            if QB == 2:
                a(f"v_add_u32 v{vPP}, {TP}, v{vPP}")
            a(f"v_cmp_ge_u32 vcc, v{vPP}, v{pv}")
        for i in range(4, 8):
            e(i)
        if chk2:
            L1, L2 = a.uid("PL"), a.uid("PD")
            a(f"s_and_b64 vcc, vcc, {sr(sHi,2)}")
            a(f"s_cbranch_vccz {L1}")
            a("s_setprio 1")
            a(f"s_branch {L2}")
            a.label(L1)
            a("s_setprio 0")
            a.label(L2)
        c(0); c(1); c(2); e(8); c(3); e(9); e(10)
        PV(0, u)
        if (u + 1) % QB == 0 and not (last and u == 7):
            rdV(0, (u + 1) // QB)
        for i in range(11, 16):
            e(i)
        c(4); c(5); c(6); c(7)

    a(f"s_mov_b32 s{sIt}, 0")
    a("s_memtime s[96:97]")
    if ALIGN:
        a.raw(f".p2align {ALIGN}")
    a.label("K2_LOOP")
    done.clear()
    for u in range(8):
        unit(u, False)
    a(f"v_add_u32 v{vKA}, {8*TP}, v{vKA}")
    a(f"v_add_u32 v{vVA0}, {8*TP}, v{vVA0}")
    a(f"v_add_u32 v{vVA1}, {8*TP}, v{vVA1}")
    a(f"s_add_u32 s{sIt}, s{sIt}, 1")
    a(f"s_cmp_lt_u32 s{sIt}, 7")
    a("s_cbranch_scc1 K2_LOOP")
    a("s_memtime s[98:99]")
    done.clear()
    for u in range(8):
        unit(u, True)
    a("s_nop 1")
    PV(1, 7)
    stamp(a, 1, 2, SWS, sW, vS[1])
    a("s_nop 11")
    a(f"s_lshl_b32 s{sT0}, s{sQB}, 15")
    a(f"s_lshl_b32 s{sT1}, s{sHead}, 10")
    a(f"s_add_u32 s{sT0}, s{sT0}, s{sT1}")
    a(f"s_add_u32 s{sT0}, s{sT0}, {OF:#x}")
    O = vO[0]
    if QB == 2:
        a(f"s_mul_i32 s{sT1}, s{sW}, 3072")
        a(f"s_add_u32 s{sT1}, s{sT1}, {CMB}")
        a(f"v_add_u32 v{vT}, s{sT1}, v{vL16}")
        a(f"s_xor_b32 s{sT1}, s{sW}, 4")
        a(f"s_mul_i32 s{sT1}, s{sT1}, 3072")
        a(f"s_add_u32 s{sT1}, s{sT1}, {CMB}")
        a(f"v_add_u32 v{vT+1}, s{sT1}, v{vL16}")
        a(f"s_cmp_ge_u32 s{sW}, 4")
        a("s_cbranch_scc1 K2_HI")
        for i in range(3):
            a(f"ds_write_b128 v{vT}, {vr(vO[1]+4*i,4)} offset:{1024*i}")
        a("s_branch K2_CJ")
        a.label("K2_HI")
        for i in range(3):
            a(f"ds_write_b128 v{vT}, {vr(vO[0]+4*i,4)} offset:{1024*i}")
        a(f"s_add_u32 s{sT0}, s{sT0}, 0x8000")
        a("s_nop 1")
        for i in range(9):
            a(f"v_mov_b32 v{vO[0]+i}, v{vO[1]+i}")
        a.label("K2_CJ")
        a("s_waitcnt lgkmcnt(0)")
        a("s_barrier")
        for i in range(3):
            a(f"ds_read_b128 {vr(vX+4*i,4)}, v{vT+1} offset:{1024*i}")
        a("s_waitcnt lgkmcnt(0)")
        for i in range(9):
            a(f"v_add_f32 v{O+i}, v{O+i}, v{vX+i}")
    a(f"v_rcp_f32 v{vX}, v{O+8}")
    a("s_nop 0")
    for i in range(8):
        a(f"v_mul_f32 v{O+i}, v{vX}, v{O+i}")
    for i in range(4):
        a(f"v_cvt_pk_bf16_f32 v{O+i}, v{O+2*i}, v{O+2*i+1}")
    a(f"buffer_store_dwordx4 {vr(O,4)}, v{vL16}, {sr(SWS,4)}, s{sT0} offen")
    a("s_waitcnt vmcnt(0)")
    stamp(a, 1, 3, SWS, sW, vX)
    a(f"v_mov_b32 v{vS[0]}, s96")
    a(f"v_mov_b32 v{vS[0]+1}, s98")
    a(f"buffer_store_dwordx2 {vr(vS[0],2)}, v{vX+2}, {sr(SWS,4)}, s92 offen offset:8")
    a.label("K2_END")
    a("s_endpgm")
    return name, nv


def main():
    out = sys.argv[1]
    a = Asm()
    ks = [gen_k1(a) + (512, K1_LDS), gen_att(a) + (512, ATT_LDS), gen_k3(a) + (256, K3_LDS)]
    hdr = "; generated\n"
    for n, nv, blk, lds in ks:
        hdr += f"; @launch kernel={n} grid=(256,1,1) block=({blk},1,1) lds={lds}\n"
    hdr += '.amdgcn_target "amdgcn-amd-amdhsa--gfx950"\n.text\n'
    body = a.text()
    probs = check_hazards(body)
    for p in probs:
        print(p)
    tail = '.section .rodata,"a"\n'
    for n, nv, blk, lds in ks:
        tail += ".p2align 6\n" + descriptor(n, nv)
    open(out, "w").write(hdr + body + tail)
    print("hazards:", len(probs))


main()
```
